```python
import torch

def _softmax(x, axis=-1):
    return torch.softmax(x, dim=axis)
def _gelu(x):
    return torch.nn.functional.gelu(x, approximate="tanh")
def _silu(x):
    return torch.nn.functional.silu(x)
def _sigmoid(x):
    return torch.sigmoid(x)
def _layernorm(x, axis=-1, eps=1e-5):
    m = x.mean(dim=axis, keepdim=True)
    v = x.var(dim=axis, keepdim=True, unbiased=False)
    return (x - m) / torch.sqrt(v + eps)
def _scatter_add(tgt, idx, src, axis=0):
    return tgt.clone().index_add_(axis, idx, src)
def _segment_sum(src, seg, n):
    out = torch.zeros((n,) + src.shape[1:], dtype=src.dtype)
    return out.index_add_(0, seg, src)
def _pad(x, pw):
    flat = tuple(v for pair in reversed(pw) for v in pair)
    return torch.nn.functional.pad(x, flat)

kernel_name = 'sequential_preLN__linear_attn_block__glu_gated_glu__prompt'

def setup_inputs():

    _w = (lambda a: (lambda t: t.to(torch.bfloat16) if t.is_floating_point() else t)(torch.as_tensor(a)))
    def _A_setup():
        B, S, D = 1, 2048, 576
        return {
            "x": _w((lambda *s: torch.randn(*s, dtype=torch.bfloat16) * 0.05)(B, S, D)),
            "wqkv": _w((lambda *s: torch.randn(*s, dtype=torch.bfloat16) * 0.05)(D, 3 * D)),
            "wo": _w((lambda *s: torch.randn(*s, dtype=torch.bfloat16) * 0.05)(D, D)),
        }
    _A_in = _A_setup()

    def _B_setup():
        B, S, D, F = 1, 2048, 576, 4608
        return {
            "x": _w((lambda *s: torch.randn(*s, dtype=torch.bfloat16) * 0.05)(B, S, D)),
            "w_gate": _w((lambda *s: torch.randn(*s, dtype=torch.bfloat16) * 0.05)(D, F)),
            "w_up": _w((lambda *s: torch.randn(*s, dtype=torch.bfloat16) * 0.05)(D, F)),
            "w_down": _w((lambda *s: torch.randn(*s, dtype=torch.bfloat16) * 0.05)(F, D)),
        }
    _B_in = _B_setup()

    return {
        "A_x": _A_in["x"],
        "A_wqkv": _A_in["wqkv"],
        "A_wo": _A_in["wo"],
        "B_x": _B_in["x"],
        "B_w_gate": _B_in["w_gate"],
        "B_w_up": _B_in["w_up"],
        "B_w_down": _B_in["w_down"],
    }

def reference(A_x, A_wqkv, A_wo, B_x, B_w_gate, B_w_up, B_w_down):
    def _A_ref(x, wqkv, wo):
        B, S, D = x.shape
        H = 32; Dh = D // H
        qkv = (lambda x, *d: x.permute(*d))((x @ wqkv).reshape(B, S, 3, H, Dh), 2, 0, 3, 1, 4)
        q, k, v = qkv[0], qkv[1], qkv[2]
        phi = lambda t: torch.where(t > 0, t + 1, torch.exp(t)) + 1e-6
        pq, pk = phi(q), phi(k)
        kv = torch.einsum("bhsd,bhse->bhde", pk, v)
        z = torch.einsum("bhsd->bhd", pk)
        num = torch.einsum("bhqd,bhde->bhqe", pq, kv)
        den = torch.einsum("bhqd,bhd->bhq", pq, z)[..., None] + 1e-6
        o = num / den
        return (lambda x, *d: x.permute(*d))(o, 0, 2, 1, 3).reshape(B, S, D) @ wo

    def _B_ref(x, w_gate, w_up, w_down):
        g = torch.einsum("bsd,df->bsf", x, w_gate)
        u = torch.einsum("bsd,df->bsf", x, w_up)
        h = _sigmoid(g) * u
        return torch.einsum("bsf,fd->bsd", h, w_down)

    x = A_x
    h = x + _A_ref(_layernorm(x, axis=-1), A_wqkv, A_wo)
    h2 = h + _B_ref(_layernorm(h, axis=-1), B_w_gate, B_w_up, B_w_down)
    return h2
```

```python
import re
import os
COUNT_STORES = os.environ.get('COUNT_STORES', '1') == '1'

REG_RE = re.compile(r'\b([vas])\[(\d+):(\d+)\]|\b([vas])(\d+)\b|\b(vcc|exec|m0|scc)\b')
TRANS = ('v_exp_f32', 'v_log_f32', 'v_rcp_f32', 'v_rsq_f32', 'v_sqrt_f32', 'v_sin_f32', 'v_cos_f32')


def regs_of(tok):
    out = []
    for m in REG_RE.finditer(tok):
        if m.group(1):
            out += [(m.group(1), i) for i in range(int(m.group(2)), int(m.group(3)) + 1)]
        elif m.group(4):
            out.append((m.group(4), int(m.group(5))))
        else:
            out.append((m.group(6), 0))
    return out


def split_ops(s):
    ops, depth, cur = [], 0, ''
    for ch in s:
        if ch == '[':
            depth += 1
        if ch == ']':
            depth -= 1
        if ch == ',' and depth == 0:
            ops.append(cur.strip()); cur = ''
        else:
            cur += ch
    if cur.strip():
        ops.append(cur.strip())
    return ops


class Ins:
    __slots__ = ('text', 'op', 'kind', 'rd', 'wr', 'passes', 'srcc', 'ab', 'slots', 'wide_store')

    def __init__(self, text):
        self.text = text
        t = text.split(';')[0].strip()
        parts = t.split(None, 1)
        self.op = parts[0]
        ops = split_ops(parts[1]) if len(parts) > 1 else []
        self.rd, self.wr, self.srcc, self.ab = [], [], [], []
        self.passes = 0
        self.slots = 1
        self.wide_store = False
        op = self.op
        if op.startswith('v_mfma'):
            self.kind = 'mfma'
            self.passes = 8 if '32x32x16' in op else 4
            self.wr = regs_of(ops[0])
            self.ab = regs_of(ops[1]) + regs_of(ops[2])
            self.srcc = regs_of(ops[3])
            self.rd = self.ab + self.srcc
        elif op.startswith('v_'):
            self.kind = 'valu'
            if op.startswith('v_cmp'):
                self.wr = regs_of(ops[0]); self.rd = sum((regs_of(o) for o in ops[1:]), [])
            elif op.startswith('v_permlane') and 'swap' in op:
                self.wr = regs_of(ops[0]) + regs_of(ops[1]); self.rd = list(self.wr)
            else:
                self.wr = regs_of(ops[0]); self.rd = sum((regs_of(o) for o in ops[1:]), [])
                if op.startswith('v_fmac') or op.startswith('v_dot2c'):
                    self.rd += self.wr
                if op.startswith('v_add_co') or op.startswith('v_addc_co'):
                    self.wr += regs_of(ops[1])
                if op.startswith('v_cndmask') and len(ops) == 3:
                    self.rd.append(('vcc', 0))
        elif op.startswith('ds_'):
            self.kind = 'ds'
            if op.startswith('ds_read') or op.startswith('ds_bpermute') or op.startswith('ds_swizzle'):
                self.wr = regs_of(ops[0]); self.rd = sum((regs_of(o) for o in ops[1:]), [])
            else:
                self.rd = sum((regs_of(o) for o in ops), [])
        elif op.startswith('buffer_') or op.startswith('global_'):
            self.kind = 'vmem'
            is_lds = bool(re.search(r'\blds\b', t))
            if 'load' in op and not is_lds:
                self.wr = regs_of(ops[0]); self.rd = sum((regs_of(o) for o in ops[1:]), [])
            else:
                self.rd = sum((regs_of(o) for o in ops), [])
                if is_lds:
                    self.rd.append(('m0', 0))
                if 'atomic' in op and 'sc0' in t:
                    self.wr = regs_of(ops[0])
                if 'store' in op and ('x4' in op or 'x3' in op):
                    self.wide_store = True
        elif op == 's_nop':
            self.kind = 'nop'; self.slots = int(ops[0], 0) + 1
        elif op.startswith('s_'):
            self.kind = 'salu'
            if op.startswith('s_cmp') or op.startswith('s_cbranch') or op in ('s_branch', 's_barrier', 's_waitcnt', 's_endpgm', 's_sleep', 's_setprio'):
                self.rd = sum((regs_of(o) for o in ops), [])
            else:
                self.wr = regs_of(ops[0]) if ops else []
                self.rd = sum((regs_of(o) for o in ops[1:]), [])
        else:
            self.kind = 'other'


class Em:
    def __init__(self):
        self.items = []
        self.vm = []
        self.lg = []
        self.vm_done = 0
        self.lg_done = 0

    def raw(self, s):
        self.items.append(s)

    def I(self, s):
        self.items.append(Ins(s))

    def label(self, s):
        self.items.append(s + ':')

    def c(self, s):
        self.items.append('    ; ' + s)

    def V(self, s, tag=None):
        self.I(s); self.vm.append(tag)

    def L(self, s, tag=None):
        self.I(s); self.lg.append(tag)

    def _need(self, lst, tags):
        if not isinstance(tags, (list, set)):
            tags = [tags]
        last = -1
        for i, t in enumerate(lst):
            if t in tags:
                last = i
        return last

    def wait_vm(self, tags, force=False):
        last = self._need(self.vm, tags)
        if last < self.vm_done and not force:
            return
        n = sum(1 for t in self.vm[last + 1:] if not ((isinstance(t, tuple) and t[0] == 'st' and not COUNT_STORES) or t == 'pf'))
        n = min(n, 63)
        self.I(f's_waitcnt vmcnt({n})')
        self.vm_done = max(self.vm_done, last + 1)

    def wait_lg(self, tags, force=False):
        last = self._need(self.lg, tags)
        if last < self.lg_done and not force:
            return
        n = len(self.lg) - last - 1
        n = min(n, 15)
        self.I(f's_waitcnt lgkmcnt({n})')
        self.lg_done = max(self.lg_done, last + 1)

    def wait_all(self, vm=True, lg=True):
        s = 's_waitcnt'
        if vm:
            s += ' vmcnt(0)'; self.vm_done = len(self.vm)
        if lg:
            s += ' lgkmcnt(0)'; self.lg_done = len(self.lg)
        self.I(s)

    def finalize(self):
        out = []
        slot = 0
        last = {}

        def need(key, dist):
            if key in last:
                gap = slot - last[key] - 1
                if gap < dist:
                    return dist - gap
            return 0

        for it in self.items:
            if not isinstance(it, Ins):
                out.append(it); continue
            n = 0
            k = it.kind
            isv = lambda r: r[0] in ('v', 'a')
            if k == 'mfma':
                for r in it.rd:
                    n = max(n, need(('valu_w', r), 2))
                for r in it.ab:
                    n = max(n, need(('mfma8_w', r), 12), need(('mfma4_w', r), 8))
                for r in it.srcc:
                    key = ('mfma_wtuple', r)
                    exact = last.get(('mfma_tup', r)) == (tuple(it.srcc), it.passes)
                    if not exact:
                        n = max(n, need(('mfma8_w', r), 10), need(('mfma4_w', r), 6))
                for r in it.wr:
                    if r not in it.srcc:
                        n = max(n, need(('mfma8_w', r), 12), need(('mfma4_w', r), 8))
                n = max(n, need(('valu_w', ('exec', 0)), 4))
            elif k == 'valu':
                for r in it.rd + it.wr:
                    n = max(n, need(('mfma8_w', r), 12), need(('mfma4_w', r), 8))
                for r in it.wr:
                    n = max(n, need(('mfma8_c', r), 7), need(('mfma4_c', r), 3))
                    n = max(n, need(('wstore', r), 2))
                if it.op not in TRANS:
                    for r in it.rd:
                        n = max(n, need(('trans_w', r), 1))
                if it.op.startswith('v_permlane'):
                    for r in it.rd:
                        n = max(n, need(('valu_w', r), 2))
                if it.op.startswith('v_readfirstlane') or it.op.startswith('v_readlane'):
                    for r in it.rd:
                        n = max(n, need(('valu_w', r), 1))
                if 'dpp' in it.text or 'row_' in it.text:
                    for r in it.rd:
                        n = max(n, need(('valu_w', r), 2))
                for r in it.rd:
                    if r[0] in ('s', 'vcc'):
                        n = max(n, need(('valu_w', r), 2))
                    if not it.op.startswith('v_dot2'):
                        n = max(n, need(('dot_w', r), 3))
                if it.op.startswith('v_dot2'):
                    ops = it.rd
                    for r in ops:
                        if r not in it.wr:
                            n = max(n, need(('dot_w', r), 3))
                for r in it.wr:
                    if not it.op.startswith('v_dot2'):
                        n = max(n, need(('dot_w', r), 3))
            elif k in ('vmem', 'ds'):
                for r in it.rd + it.wr:
                    n = max(n, need(('mfma8_w', r), 12), need(('mfma4_w', r), 8))
                for r in it.rd:
                    if r[0] == 's':
                        n = max(n, need(('valu_w', r), 5))
                    if r[0] == 'm0':
                        n = max(n, need(('salu_w', r), 1))
                    n = max(n, need(('dot_w', r), 3))
                for r in it.wr:
                    n = max(n, need(('wstore', r), 1))
            elif k == 'salu':
                for r in it.rd:
                    n = max(n, need(('valu_w', r), 1))
            while n > 0:
                m = min(n, 16)
                out.append(f'    s_nop {m-1}')
                slot += m; n -= m
            out.append('    ' + it.text)
            if k == 'mfma':
                cl = 'mfma8' if it.passes == 8 else 'mfma4'
                for r in it.wr:
                    last[(cl + '_w', r)] = slot
                    last[('mfma_tup', r)] = (tuple(it.wr), it.passes)
                for r in it.srcc:
                    last[(cl + '_c', r)] = slot
            elif k == 'valu':
                for r in it.wr:
                    last[('valu_w', r)] = slot
                    last.pop(('mfma_tup', r), None)
                    if it.op in TRANS:
                        last[('trans_w', r)] = slot
                    if it.op.startswith('v_dot2'):
                        last[('dot_w', r)] = slot
            elif k == 'salu':
                for r in it.wr:
                    last[('salu_w', r)] = slot
            elif k == 'vmem' and it.wide_store:
                for r in regs_of(split_ops(it.text.split(None, 1)[1])[0]):
                    last[('wstore', r)] = slot
            slot += it.slots
        return '\n'.join(out) + '\n'
```

```python
import sys
from k1 import *
from k2 import *
from k3 import *
import k1, k2, k3
def build(path, k3kw=None, header_comment=''):
    hdr = header_comment + f"""; @launch kernel=qkv_kernel grid=(256,1,1) block=(256,1,1) lds={K1_LDS}
; @launch kernel=attn_kernel grid=(256,1,1) block=(256,1,1) lds={K2_LDS}
; @launch kernel=ffn_kernel grid=(256,1,1) block=(256,1,1) lds={K3_LDS}
; @launch kernel=red_kernel grid=(576,1,1) block=(256,1,1) lds=0
.amdgcn_target "amdgcn-amd-amdhsa--gfx950"
.text
"""
    open(path, 'w').write(hdr + gen_k1() + gen_k2() + gen_k3(**(k3kw or {})) + gen_k4())
if __name__ == '__main__':
    build('full.s')
```

```python
WS_KV = 0
KV_HEAD_BYTES = 19 * 24 * 4
WS_PQ = 0x10000
ACT_BYTES = 2048 * 576 * 2
WS_H = WS_PQ + ACT_BYTES
WS_P = WS_H + ACT_BYTES
LOG2E = 0x3fb8aa3b
NLOG2E = 0xbfb8aa3b

def kd(name, vgpr, agpr_off, sgpr=102):
    return f""".section .rodata,"a"
.p2align 6
.amdhsa_kernel {name}
  .amdhsa_next_free_vgpr {vgpr}
  .amdhsa_next_free_sgpr {sgpr}
  .amdhsa_accum_offset {agpr_off}
  .amdhsa_group_segment_fixed_size 0
  .amdhsa_kernarg_size 80
  .amdhsa_user_sgpr_count 2
  .amdhsa_user_sgpr_kernarg_segment_ptr 1
  .amdhsa_system_sgpr_workgroup_id_x 1
.end_amdhsa_kernel
.text
"""

def head(name):
    return f""".globl {name}
.p2align 8
.type {name},@function
{name}:
"""

def srd(e, d, lo, hi, nbytes):
    e.I(f's_mov_b32 s{d}, s{lo}')
    e.I(f's_and_b32 s{d+1}, s{hi}, 0xffff')
    e.I(f's_mov_b32 s{d+2}, {nbytes}')
    e.I(f's_mov_b32 s{d+3}, 0x00020000')

def srd_off(e, d, lo, hi, off, nbytes):
    e.I(f's_add_u32 s{d}, s{lo}, {off}')
    e.I(f's_addc_u32 s{d+1}, s{hi}, 0')
    e.I(f's_and_b32 s{d+1}, s{d+1}, 0xffff')
    e.I(f's_mov_b32 s{d+2}, {nbytes}')
    e.I(f's_mov_b32 s{d+3}, 0x00020000')

def ln_stats(e, XB, T, vrstd, vnb, tags, group=6):
    for i in range(8):
        e.I(f'v_mov_b32 v{T+i}, 0')
    e.I(f'v_mov_b32 v{T+8}, 0x3f803f80')
    for s in range(36):
        if s % group == 0:
            e.wait_vm(tags[min(s + group - 1, 35)])
        for j in range(4):
            r = XB + 4 * s + j
            e.I(f'v_dot2_f32_bf16 v{T+j}, v{r}, v{T+8}, v{T+j}')
            e.I(f'v_dot2_f32_bf16 v{T+4+j}, v{r}, v{r}, v{T+4+j}')
    e.I(f'v_add_f32 v{T}, v{T}, v{T+1}')
    e.I(f'v_add_f32 v{T+2}, v{T+2}, v{T+3}')
    e.I(f'v_add_f32 v{T+4}, v{T+4}, v{T+5}')
    e.I(f'v_add_f32 v{T+6}, v{T+6}, v{T+7}')
    e.I(f'v_add_f32 v{T}, v{T}, v{T+2}')
    e.I(f'v_add_f32 v{T+4}, v{T+4}, v{T+6}')
    e.I(f'v_mov_b32 v{T+1}, v{T}')
    e.I(f'v_mov_b32 v{T+5}, v{T+4}')
    e.I(f'v_permlane32_swap_b32 v{T}, v{T+1}')
    e.I(f'v_permlane32_swap_b32 v{T+4}, v{T+5}')
    e.I(f'v_add_f32 v{T}, v{T}, v{T+1}')
    e.I(f'v_add_f32 v{T+4}, v{T+4}, v{T+5}')
    inv = 0x3ae38e39
    e.I(f'v_mul_f32 v{T}, {inv:#x}, v{T}')
    e.I(f'v_mul_f32 v{T+4}, {inv:#x}, v{T+4}')
    e.I(f'v_fma_f32 v{T+4}, -v{T}, v{T}, v{T+4}')
    e.I(f'v_max_f32 v{T+4}, 0, v{T+4}')
    e.I(f'v_add_f32 v{T+4}, 0x3727c5ac, v{T+4}')
    e.I(f'v_rsq_f32 v{vrstd}, v{T+4}')
    e.I(f'v_mul_f32 v{vnb}, v{T}, v{vrstd}')
    e.I(f'v_sub_f32 v{vnb}, 0, v{vnb}')

def ln_norm_ops(XB, s, t0, t1, vrstd, vnb):
    ops = []
    for j in range(4):
        r = XB + 4 * s + j
        a, b = (t0, t1) if j % 2 == 0 else (t0 + 2, t1 + 2)
        ops.append(f'v_lshlrev_b32 v{a}, 16, v{r}')
        ops.append(f'v_and_b32 v{b}, 0xffff0000, v{r}')
        ops.append(f'v_fma_f32 v{a}, v{a}, v{vrstd}, v{vnb}')
        ops.append(f'v_fma_f32 v{b}, v{b}, v{vrstd}, v{vnb}')
        ops.append(f'v_cvt_pk_bf16_f32 v{r}, v{a}, v{b}')
    return ops

WS_ST = 0xF000
WS_STATS = WS_P + 16 * ACT_BYTES
STATS_BYTES = 2048 * 64
OOB = 0x7ff00000
```

```python
from asmlib import Em
from common import *

K1_LDS = 576 * 256
XB = 32
AC = 176
FB = 0

def gen_k1(name='qkv_kernel', D=4, BGRP=6):
    e = Em()
    e.raw(head(name))
    e.I('s_cmp_ge_u32 s2, 256')
    e.I('s_cbranch_scc1 L_k1_done')
    e.I('s_load_dwordx4 s[4:7], s[0:1], 0')
    e.I('s_load_dwordx4 s[28:31], s[0:1], 64')
    e.I('v_lshrrev_b32 v1, 6, v0')
    e.I('v_readfirstlane_b32 s3, v1')
    e.I('v_and_b32 v1, 63, v0')
    e.I('s_and_b32 s24, s2, 1')
    e.I('s_lshl_b32 s24, s24, 3')
    e.I('s_lshr_b32 s26, s2, 3')
    e.I('s_and_b32 s27, s26, 7')
    e.I('s_add_u32 s24, s24, s27')
    e.I('s_bfe_u32 s25, s2, 0x20001')
    e.I('s_lshl_b32 s25, s25, 2')
    e.I('s_lshr_b32 s26, s26, 3')
    e.I('s_add_u32 s25, s25, s26')
    e.I('s_lshl_b32 s32, s24, 7')
    e.I('s_lshl_b32 s33, s3, 5')
    e.I('s_add_u32 s32, s32, s33')
    e.I('v_and_b32 v2, 31, v1')
    e.I('v_lshrrev_b32 v3, 5, v1')
    e.I('v_add_u32 v4, s32, v2')
    e.I('v_mul_u32_u24 v5, 1152, v4')
    e.I('v_lshl_add_u32 v6, v3, 4, v5')
    e.I('v_lshrrev_b32 v7, 4, v1')
    e.I('v_and_b32 v8, 15, v1')
    e.I('v_lshlrev_b32 v9, 2, v7')
    e.I('v_xor_b32 v8, v8, v9')
    e.I('v_min_u32 v8, 14, v8')
    e.I('v_mul_u32_u24 v9, 13, v8')
    e.I('v_lshrrev_b32 v9, 6, v9')
    e.I('v_mul_u32_u24 v10, 5, v9')
    e.I('v_sub_u32 v10, v8, v10')
    e.I('v_mul_u32_u24 v9, 1152, v9')
    e.I('v_lshl_add_u32 v9, v10, 4, v9')
    e.I('v_mul_u32_u24 v7, 3456, v7')
    e.I('v_add_u32 v9, v9, v7')
    e.I('s_mul_i32 s34, s25, 72')
    e.I('s_mul_i32 s35, s3, %d' % (4 * 3456))
    e.I('s_add_u32 s34, s34, s35')
    e.I('v_add_u32 v9, s34, v9')
    e.I('s_lshl_b32 s36, s3, 10')
    e.I('s_waitcnt lgkmcnt(0)')
    srd(e, 8, 4, 5, ACT_BYTES)
    srd(e, 12, 6, 7, 576 * 1728 * 2)
    srd_off(e, 16, 30, 31, WS_PQ, ACT_BYTES)
    srd_off(e, 20, 30, 31, WS_KV, 32 * KV_HEAD_BYTES)
    srd(e, 40, 28, 29, 256)
    e.I('s_cmp_lg_u32 s3, 3')
    e.I('s_cbranch_scc1 L_k1_noinit')
    e.I('v_mov_b32 v11, 1')
    e.I('s_lshl_b32 s37, s25, 2')
    e.I(f'v_mov_b32 v12, {OOB}')
    e.I('v_cmp_eq_u32 vcc, 0, v1')
    e.I('v_cndmask_b32 v12, v12, 0, vcc')
    e.I('buffer_atomic_add v11, v12, s[40:43], s37 offen sc0')
    e.I('s_waitcnt vmcnt(0)')
    e.I('v_readfirstlane_b32 s38, v11')
    e.I('s_cmp_lg_u32 s38, 0')
    e.I('s_cbranch_scc1 L_k1_noinit')
    e.I('s_mul_i32 s39, s25, %d' % (2 * KV_HEAD_BYTES))
    e.I('v_lshlrev_b32 v13, 2, v1')
    for i in range(15):
        e.I(f'v_mov_b32 v{14+i}, 0')
    e.I('v_cmp_gt_u32 vcc, 16, v1')
    e.I(f'v_mov_b32 v30, {OOB}')
    e.I('v_cndmask_b32 v30, v30, v13, vcc')
    for i in range(15):
        vo = 13 if i < 14 else 30
        e.I(f'buffer_atomic_swap v{14+i}, v{vo}, s[20:23], s39 offen offset:{256*i} sc0')
    e.I('s_waitcnt vmcnt(0)')
    e.I('v_mov_b32 v11, 1')
    e.I('buffer_atomic_add v11, v12, s[40:43], s37 offen offset:64 sc0')
    e.I('s_waitcnt vmcnt(0)')
    e.label('L_k1_noinit')
    for s in range(36):
        e.V(f'buffer_load_dwordx4 v[{XB+4*s}:{XB+4*s+3}], v6, s[8:11], 0 offen offset:{32*s}', ('x', s))
    for s in range(36):
        e.I(f's_add_u32 m0, s36, {s*4096}')
        e.I(f's_mov_b32 s44, {s*16*3456}')
        e.V('buffer_load_dwordx4 v9, s[12:15], s44 offen lds', ('w', s))
    e.I('v_and_b32 v10, 3, v1')
    e.I('v_bfe_u32 v11, v1, 2, 2')
    e.I('v_bfe_u32 v12, v1, 4, 1')
    e.I('v_lshl_add_u32 v13, v3, 3, v11')
    e.I('v_lshlrev_b32 v13, 8, v13')
    e.I('v_lshl_add_u32 v13, v12, 5, v13')
    e.I('v_lshl_add_u32 v13, v10, 3, v13')
    for T in range(4):
        e.I(f'v_xor_b32 v14, {T}, v11')
        e.I(f'v_lshl_add_u32 v{16+T}, v14, 6, v13')
    ln_stats(e, XB, AC, 21, 22, [('x', s) for s in range(36)])
    for op in ln_norm_ops(XB, 0, 24, 25, 21, 22):
        e.I(op)
    NM = 144
    def frag_reads(i):
        s, T = i // 4, i % 4
        f = FB + 4 * (i % 8)
        if T == 0 and s in (16, 32):
            for t in range(4):
                e.I(f'v_add_u32 v{16+t}, 0x10000, v{16+t}')
        o = (s % 16) * 4096
        e.L(f'ds_read_b64_tr_b16 a[{f}:{f+1}], v{16+T} offset:{o}', ('f', i))
        e.L(f'ds_read_b64_tr_b16 a[{f+2}:{f+3}], v{16+T} offset:{o+1024}', ('f', i))
    def maybe_barrier(j):
        s = j // 4
        if j % 4 == 0 and s % BGRP == 0:
            e.wait_vm(('w', min(s + BGRP - 1, 35)))
            e.I('s_barrier')
    for j in range(D):
        maybe_barrier(j); frag_reads(j)
    pend = []
    for i in range(NM):
        s, T = i // 4, i % 4
        if T == 0 and s + 1 < 36:
            pend = ln_norm_ops(XB, s + 1, 24, 25, 21, 22)
        if i + D < NM:
            maybe_barrier(i + D); frag_reads(i + D)
        for _ in range(5):
            if pend:
                e.I(pend.pop(0))
        e.wait_lg(('f', i))
        f = FB + 4 * (i % 8)
        acc = f'v[{AC+16*T}:{AC+16*T+15}]'
        e.I(f'v_mfma_f32_32x32x16_bf16 {acc}, a[{f}:{f+3}], v[{XB+4*s}:{XB+4*s+3}], {acc if s else "0"}')
    def R(T, a, c):
        return AC + 16 * T + 4 * a + c
    phi_groups = [(0, 0), (0, 1), (0, 2), (0, 3), (1, 0), (1, 1), (1, 2), (1, 3), (2, 0), (2, 1)]
    for (T, a) in phi_groups:
        for c in range(4):
            r = R(T, a, c)
            t = 24 + c
            e.I(f'v_min_f32 v{t}, 0, v{r}')
            e.I(f'v_mul_f32 v{t}, {LOG2E:#x}, v{t}')
            e.I(f'v_exp_f32 v{t}, v{t}')
            e.I(f'v_max_f32 v{r}, 0, v{r}')
            e.I(f'v_add_f32 v{r}, 0x358637bd, v{r}')
            e.I(f'v_add_f32 v{r}, v{r}, v{t}')
    def P(T, a):
        return XB + (T * 4 + a) * 2
    for T in range(4):
        for a in range(4):
            if (T, a) == (3, 3):
                continue
            e.I(f'v_cvt_pk_bf16_f32 v{P(T,a)}, v{R(T,a,0)}, v{R(T,a,1)}')
            e.I(f'v_cvt_pk_bf16_f32 v{P(T,a)+1}, v{R(T,a,2)}, v{R(T,a,3)}')
    e.I('s_mul_i32 s45, s25, 72')
    e.I('v_lshl_add_u32 v23, v3, 3, v5')
    e.I('v_add_u32 v23, s45, v23')
    e.I(f'v_mov_b32 v28, {OOB}')
    e.I('v_cmp_eq_u32 s[46:47], 0, v3')
    e.I('v_cndmask_b32 v29, v28, v23, s[46:47]')
    for a in range(4):
        e.V(f'buffer_store_dwordx2 v[{P(0,a)}:{P(0,a)+1}], v23, s[16:19], 0 offen offset:{16*a}', ('st', a))
    e.V(f'buffer_store_dwordx2 v[{P(1,0)}:{P(1,0)+1}], v29, s[16:19], 0 offen offset:64', ('st', 4))
    e.I('s_barrier')
    e.I('s_lshl_b32 s48, s3, 5')
    e.I('v_add_u32 v30, s48, v2')
    e.I('v_lshlrev_b32 v30, 8, v30')
    def pos(col):
        return (col // 18) * 64 + (col % 18) * 2
    DUMMY = 60
    groups = [((1, 1), 0, 0), ((1, 2), 0, 2), ((1, 3), 0, 4), ((2, 0), 0, 6), ((2, 1), 0, 8),
              ((2, 2), 128, 0), ((2, 3), 128, 2), ((3, 0), 128, 4), ((3, 1), 128, 6), ((3, 2), 128, 8)]
    for (T, a), part, ch0 in groups:
        for pr in range(2):
            x0 = part + pos(4 * ch0 + 2 * pr)
            x1 = part + pos(4 * (ch0 + 1) + 2 * pr) if ch0 < 8 else DUMMY
            d = x1 - x0
            e.I(f'v_mov_b32 v31, {d}')
            e.I('v_mad_i32_i24 v31, v3, v31, v30')
            e.L(f'ds_write_b32 v31, v{P(T,a)+pr} offset:{x0}', 'w')
    e.I('v_lshl_add_u32 v31, v3, 6, v30')
    e.I('v_mov_b32 v28, 0x3f80')
    e.L('ds_write_b32 v31, v28 offset:164', 'w')
    e.I('s_waitcnt lgkmcnt(0)')
    e.lg_done = len(e.lg)
    e.I('s_barrier')
    e.I('s_cmp_ge_u32 s3, 2')
    e.I('s_cbranch_scc1 L_k1_done')
    e.I('v_lshl_add_u32 v13, v3, 3, v11')
    e.I('v_lshlrev_b32 v13, 8, v13')
    e.I('v_lshl_add_u32 v13, v12, 5, v13')
    e.I('v_lshl_add_u32 v13, v10, 3, v13')
    e.I('s_lshl_b32 s49, s3, 6')
    e.I('v_add_u32 v13, s49, v13')
    e.I('v_mov_b32 v14, 0')
    e.I('s_lshl_b32 s37, s25, 2')
    for ks in range(8):
        r = 64 + 8 * ks
        e.L(f'ds_read_b64_tr_b16 v[{r}:{r+1}], v13 offset:{ks*4096 + 128}', ('k', ks))
        e.L(f'ds_read_b64_tr_b16 v[{r+2}:{r+3}], v13 offset:{ks*4096 + 128 + 1024}', ('k', ks))
        e.L(f'ds_read_b64_tr_b16 v[{r+4}:{r+5}], v13 offset:{ks*4096}', ('k', ks))
        e.L(f'ds_read_b64_tr_b16 v[{r+6}:{r+7}], v13 offset:{ks*4096 + 1024}', ('k', ks))
        if ks >= 2:
            k2 = ks - 2
            e.wait_lg(('k', k2))
            r2 = 64 + 8 * k2
            e.I(f'v_mfma_f32_32x32x16_bf16 v[{AC}:{AC+15}], v[{r2}:{r2+3}], v[{r2+4}:{r2+7}], {"v[%d:%d]" % (AC, AC+15) if k2 else "0"}')
    for k2 in (6, 7):
        e.wait_lg(('k', k2))
        r2 = 64 + 8 * k2
        e.I(f'v_mfma_f32_32x32x16_bf16 v[{AC}:{AC+15}], v[{r2}:{r2+3}], v[{r2+4}:{r2+7}], v[{AC}:{AC+15}]')
    e.I('s_lshl_b32 s50, s25, 1')
    e.I('s_add_u32 s50, s50, s3')
    e.I('s_mul_i32 s50, s50, %d' % KV_HEAD_BYTES)
    e.I('v_mul_u32_u24 v15, 384, v3')
    e.I('v_lshl_add_u32 v15, v2, 2, v15')
    e.I('v_cmp_gt_u32 vcc, 18, v2')
    e.I(f'v_mov_b32 v28, {OOB}')
    e.I('v_cndmask_b32 v15, v28, v15, vcc')
    e.I('v_cndmask_b32 v16, v28, v15, s[46:47]')
    e.label('L_k1_poll')
    e.I('buffer_load_dword v17, v14, s[40:43], s37 offen offset:64 sc0 sc1')
    e.I('s_waitcnt vmcnt(0)')
    e.I('v_readfirstlane_b32 s51, v17')
    e.I('s_cmp_lg_u32 s51, 0')
    e.I('s_cbranch_scc1 L_k1_go')
    e.I('s_sleep 2')
    e.I('s_branch L_k1_poll')
    e.label('L_k1_go')
    for a in range(2):
        for c in range(4):
            e.I(f'buffer_atomic_add_f32 v{AC+4*a+c}, v15, s[20:23], s50 offen offset:{(8*a+c)*96}')
    for c in range(3):
        e.I(f'buffer_atomic_add_f32 v{AC+8+c}, v16, s[20:23], s50 offen offset:{(16+c)*96}')
    e.label('L_k1_done')
    e.I('s_endpgm')
    return e.finalize() + kd(name, 288, 256)

for lc in range(15):
    assert (lc * 13) >> 6 == lc // 5
```

```python
from asmlib import Em
from common import *

PQ_PITCH = 1168
PQ_LDS = 64 * PQ_PITCH
WO_LDS = PQ_LDS
K2_LDS = PQ_LDS + 576 * 144 + 1024

def gen_k2(name='attn_kernel'):
    e = Em()
    e.raw(head(name))
    e.I('s_cmp_ge_u32 s2, 256')
    e.I('s_cbranch_scc1 L_k2_done')
    e.I('s_load_dwordx2 s[4:5], s[0:1], 0')
    e.I('s_load_dwordx2 s[6:7], s[0:1], 16')
    e.I('s_load_dwordx2 s[30:31], s[0:1], 72')
    e.I('v_lshrrev_b32 v1, 6, v0')
    e.I('v_readfirstlane_b32 s3, v1')
    e.I('v_and_b32 v1, 63, v0')
    e.I('s_and_b32 s24, s2, 7')
    e.I('s_lshl_b32 s24, s24, 2')
    e.I('s_lshr_b32 s25, s2, 3')
    e.I('s_and_b32 s26, s25, 3')
    e.I('s_add_u32 s24, s24, s26')
    e.I('s_lshr_b32 s25, s25, 2')
    e.I('v_and_b32 v2, 15, v1')
    e.I('v_lshrrev_b32 v3, 4, v1')
    e.I('s_waitcnt lgkmcnt(0)')
    srd(e, 8, 4, 5, ACT_BYTES)
    srd(e, 12, 6, 7, 576 * 576 * 2)
    srd_off(e, 16, 30, 31, WS_PQ, ACT_BYTES)
    srd_off(e, 20, 30, 31, WS_KV, 32 * KV_HEAD_BYTES)
    srd_off(e, 36, 30, 31, WS_H, ACT_BYTES)
    srd_off(e, 40, 30, 31, WS_STATS, STATS_BYTES)

    e.I('v_mul_u32_u24 v4, 96, v2')
    e.I('v_lshlrev_b32 v5, 5, v3')
    e.I('v_add_u32 v4, v4, v5')
    e.I(f'v_mov_b32 v6, {OOB}')
    e.I('v_cmp_gt_u32 vcc, 3, v3')
    e.I('v_cndmask_b32 v4, v6, v4, vcc')
    e.I('v_add_u32 v7, 16, v2')
    e.I('v_and_b32 v8, 3, v2')
    e.I('v_cmp_eq_u32 s[44:45], 2, v8')
    e.I('v_cndmask_b32 v7, v7, 18, s[44:45]')
    e.I('v_mul_u32_u24 v7, 96, v7')
    e.I('v_add_u32 v7, v7, v5')
    e.I('v_cmp_gt_u32 s[46:47], 2, v2')
    e.I('s_or_b64 s[44:45], s[44:45], s[46:47]')
    e.I('s_and_b64 s[44:45], s[44:45], vcc')
    e.I('v_cndmask_b32 v7, v6, v7, s[44:45]')
    e.I('s_mul_i32 s27, s3, %d' % (8 * KV_HEAD_BYTES))
    KVR = 64
    for hh in range(8):
        e.I(f's_add_u32 s28, s27, {hh*KV_HEAD_BYTES}')
        for tl, vo in ((0, 4), (1, 7)):
            r = KVR + (hh * 2 + tl) * 8
            e.V(f'buffer_load_dwordx4 v[{r}:{r+3}], v{vo}, s[20:23], s28 offen', ('kv', hh))
            e.V(f'buffer_load_dwordx4 v[{r+4}:{r+7}], v{vo}, s[20:23], s28 offen offset:16', ('kv', hh))

    e.I('s_mul_i32 s29, s24, %d' % (64 * 1152))
    e.I('s_lshl_b32 s32, s3, 6')
    e.I('v_add_u32 v9, s32, v1')
    e.I('s_lshl_b32 s33, s3, 10')
    npq = 19
    for j in range(npq):
        if j > 0:
            e.I('v_add_u32 v9, 256, v9')
        e.I('v_mul_u32_u24 v10, 28729, v9')
        e.I('v_lshrrev_b32 v10, 21, v10')
        e.I('v_mul_u32_u24 v11, 73, v10')
        e.I('v_sub_u32 v11, v9, v11')
        e.I('v_mul_u32_u24 v10, 1152, v10')
        e.I('v_lshl_add_u32 v10, v11, 4, v10')
        e.I('v_cmp_gt_u32 vcc, 72, v11')
        e.I('v_cndmask_b32 v10, v6, v10, vcc')
        e.I(f's_add_u32 m0, s33, {j*4096}')
        if j == npq - 1:
            e.I('s_cmp_lg_u32 s3, 0')
            e.I('s_cbranch_scc1 L_k2_skip_pq')
        e.V('buffer_load_dwordx4 v10, s[16:19], s29 offen lds', ('pq', j))
        if j == npq - 1:
            e.label('L_k2_skip_pq')
    e.I('s_mul_i32 s34, s25, 144')
    e.I('v_add_u32 v9, s32, v1')
    nwo = 21
    for j in range(nwo):
        if j > 0:
            e.I('v_add_u32 v9, 256, v9')
        e.I('v_mul_u32_u24 v10, 58255, v9')
        e.I('v_lshrrev_b32 v10, 19, v10')
        e.I('v_mul_u32_u24 v11, 9, v10')
        e.I('v_sub_u32 v11, v9, v11')
        e.I('v_mul_u32_u24 v10, 1152, v10')
        e.I('v_lshl_add_u32 v10, v11, 4, v10')
        e.I(f's_add_u32 m0, s33, {WO_LDS + j*4096}')
        if j == nwo - 1:
            e.I('s_cmp_lg_u32 s3, 0')
            e.I('s_cbranch_scc1 L_k2_skip_wo')
        e.V('buffer_load_dwordx4 v10, s[12:15], s34 offen lds', ('wo', j))
        if j == nwo - 1:
            e.label('L_k2_skip_wo')
    e.I('s_lshl_b32 s35, s24, 6')
    e.I('s_lshl_b32 s48, s3, 4')
    e.I('s_add_u32 s35, s35, s48')
    e.I('v_add_u32 v12, s35, v2')
    e.I('v_mul_u32_u24 v13, 1152, v12')
    e.I('v_lshl_add_u32 v13, v3, 3, v13')
    e.I('v_add_u32 v13, s34, v13')
    XR = 40
    for T in range(5):
        e.V(f'buffer_load_dwordx2 v[{XR+2*T}:{XR+2*T+1}], v13, s[8:11], 0 offen offset:{32*T}', ('x', T))

    KF = 192
    e.I('s_waitcnt vmcnt(40)')
    for f in range(16):
        r = KVR + f * 8
        for c in range(4):
            e.I(f'v_cvt_pk_bf16_f32 v{KF+4*f+c}, v{r+2*c}, v{r+2*c+1}')
    e.I('s_waitcnt vmcnt(25)')
    e.I('s_barrier')
    e.I(f'v_mul_u32_u24 v14, {PQ_PITCH}, v2')
    e.I('v_min_u32 v16, 2, v3')
    e.I('v_lshl_add_u32 v14, v16, 4, v14')
    e.I('s_mul_i32 s49, s3, 288')
    e.I('v_add_u32 v14, s49, v14')
    e.I(f'v_mul_u32_u24 v15, {PQ_PITCH}, v2')
    e.I('v_lshl_add_u32 v15, v3, 3, v15')
    e.I('v_add_u32 v15, s49, v15')
    e.I('v_cmp_eq_u32 s[50:51], 0, v3')
    PB = 64
    def reads(mt):
        if mt > 0:
            e.I(f'v_add_u32 v16, {mt*16*PQ_PITCH}, v14')
        base = 14 if mt == 0 else 16
        for hh in range(8):
            r = PB + (mt * 8 + hh) * 4
            o = 9 * hh
            e.L(f'ds_read2_b32 v[{r}:{r+1}], v{base} offset0:{o} offset1:{o+1}', ('b', mt, hh))
            e.L(f'ds_read2_b32 v[{r+2}:{r+3}], v{base} offset0:{o+2} offset1:{o+3}', ('b', mt, hh))
    reads(0)
    for mt in range(4):
        for hh in range(8):
            idx = mt * 8 + hh
            r = PB + idx * 4
            acc = (idx % 8) * 8
            e.wait_lg(('b', mt, hh))
            e.I(f'v_mfma_f32_16x16x32_bf16 a[{acc}:{acc+3}], v[{KF+8*hh}:{KF+8*hh+3}], v[{r}:{r+3}], 0')
            e.I(f'v_mfma_f32_16x16x32_bf16 a[{acc+4}:{acc+7}], v[{KF+8*hh+4}:{KF+8*hh+7}], v[{r}:{r+3}], 0')
        if mt < 3:
            reads(mt + 1)
        if mt > 0:
            e.I(f'v_add_u32 v17, {mt*16*PQ_PITCH}, v15')
        wb = 15 if mt == 0 else 17
        for hh in range(8):
            acc = hh * 8
            T = 20 + (hh % 2) * 8
            for c in range(7):
                e.I(f'v_accvgpr_read_b32 v{T+c}, a{acc+c}')
            e.I(f'v_add_f32 v{T+6}, 0x358637bd, v{T+6}')
            e.I(f'v_rcp_f32 v{T+6}, v{T+6}')
            for c in range(6):
                e.I(f'v_mul_f32 v{T+c}, v{T+c}, v{T+6}')
            e.I(f'v_cvt_pk_bf16_f32 v{T}, v{T}, v{T+1}')
            e.I(f'v_cvt_pk_bf16_f32 v{T+1}, v{T+2}, v{T+3}')
            e.I(f'v_cvt_pk_bf16_f32 v{T+2}, v{T+4}, v{T+5}')
            o = 9 * hh
            e.L(f'ds_write2_b32 v{wb}, v{T}, v{T+1} offset0:{o} offset1:{o+1}', 'w')
            e.I('s_mov_b64 exec, s[50:51]')
            e.L(f'ds_write_b32 v{wb}, v{T+2} offset:{4*(o+8)}', 'w')
            e.I('s_mov_b64 exec, -1')
    e.I('s_waitcnt vmcnt(5) lgkmcnt(0)')
    e.lg_done = len(e.lg)
    e.I('s_barrier')
    e.I('s_mul_i32 s49, s3, %d' % (16 * PQ_PITCH))
    e.I(f'v_mul_u32_u24 v14, {PQ_PITCH}, v2')
    e.I('v_lshl_add_u32 v14, v3, 4, v14')
    e.I('v_add_u32 v14, s49, v14')
    e.I('v_and_b32 v18, 3, v1')
    e.I('v_bfe_u32 v19, v1, 2, 2')
    e.I('v_lshl_add_u32 v19, v3, 3, v19')
    e.I('v_mul_u32_u24 v19, 144, v19')
    e.I('v_lshl_add_u32 v19, v18, 3, v19')
    e.I(f'v_add_u32 v19, {WO_LDS}, v19')
    e.I(f'v_add_u32 v18, {9*32*144}, v19')
    NB = 3
    def rd(s):
        bb = 64 + (s % NB) * 24
        e.L(f'ds_read_b128 v[{bb}:{bb+3}], v14 offset:{64*s}', ('g', s))
        base = 19 if s < 9 else 18
        so = (s % 9) * 32 * 144
        for T in range(5):
            r = bb + 4 + 4 * T
            e.L(f'ds_read_b64_tr_b16 v[{r}:{r+1}], v{base} offset:{so + 32*T}', ('g', s))
            e.L(f'ds_read_b64_tr_b16 v[{r+2}:{r+3}], v{base} offset:{so + 32*T + 4*144}', ('g', s))
    rd(0)
    for s in range(18):
        if s + 1 < 18:
            rd(s + 1)
        e.wait_lg(('g', s))
        bb = 64 + (s % NB) * 24
        for T in range(5):
            c = f'v[{200+4*T}:{203+4*T}]' if s > 0 else '0'
            e.I(f'v_mfma_f32_16x16x32_bf16 v[{200+4*T}:{203+4*T}], v[{bb+4+4*T}:{bb+7+4*T}], v[{bb}:{bb+3}], {c}')
    e.I('s_waitcnt vmcnt(0)')
    e.I('v_lshrrev_b32 v20, 5, v12')
    e.I('v_mul_u32_u24 v20, %d, v20' % (36 * 1024))
    e.I('v_and_b32 v21, 31, v12')
    e.I('v_lshl_add_u32 v20, v21, 4, v20')
    e.I('s_mul_i32 s52, s25, 72')
    e.I('v_lshlrev_b32 v21, 2, v3')
    e.I('v_add_u32 v21, s52, v21')
    e.I('v_lshrrev_b32 v22, 3, v21')
    e.I('v_lshl_add_u32 v20, v22, 9, v20')
    e.I('v_and_b32 v22, 7, v21')
    e.I('v_lshl_add_u32 v20, v22, 1, v20')
    e.I('v_cmp_gt_u32 vcc, 2, v3')
    e.I('v_cndmask_b32 v23, v6, v20, vcc')
    e.I('v_mov_b32 v30, 0')
    e.I('v_mov_b32 v31, 0')
    e.I('s_movk_i32 s53, 0x1000')
    for T in range(5):
        a = 200 + 4 * T
        x = XR + 2 * T
        e.I(f'v_lshlrev_b32 v24, 16, v{x}')
        e.I(f'v_and_b32 v25, 0xffff0000, v{x}')
        e.I(f'v_lshlrev_b32 v26, 16, v{x+1}')
        e.I(f'v_and_b32 v27, 0xffff0000, v{x+1}')
        for c in range(4):
            e.I(f'v_add_f32 v{a+c}, v{a+c}, v{24+c}')
        e.I(f'v_cvt_pk_bf16_f32 v{a}, v{a}, v{a+1}')
        e.I(f'v_cvt_pk_bf16_f32 v{a+1}, v{a+2}, v{a+3}')
        if T < 4:
            e.V(f'buffer_store_dwordx2 v[{a}:{a+1}], v20, s[36:39], 0 offen offset:{1024*T}', ('st', T))
        else:
            e.V(f'buffer_store_dwordx2 v[{a}:{a+1}], v23, s[36:39], s53 offen', ('st', T))
            e.I(f'v_cndmask_b32 v{a}, 0, v{a}, vcc')
            e.I(f'v_cndmask_b32 v{a+1}, 0, v{a+1}, vcc')
        e.I('v_mov_b32 v28, 0x3f803f80')
        e.I(f'v_dot2_f32_bf16 v30, v{a}, v28, v30')
        e.I(f'v_dot2_f32_bf16 v31, v{a}, v{a}, v31')
        e.I(f'v_dot2_f32_bf16 v30, v{a+1}, v28, v30')
        e.I(f'v_dot2_f32_bf16 v31, v{a+1}, v{a+1}, v31')
    for sw in ('v_permlane16_swap_b32', 'v_permlane32_swap_b32'):
        e.I('v_mov_b32 v32, v30')
        e.I('v_mov_b32 v33, v31')
        e.I(f'{sw} v30, v32')
        e.I(f'{sw} v31, v33')
        e.I('v_add_f32 v30, v30, v32')
        e.I('v_add_f32 v31, v31, v33')
    e.I('v_lshlrev_b32 v34, 6, v12')
    e.I('s_lshl_b32 s54, s25, 3')
    e.I('v_add_u32 v34, s54, v34')
    e.I('v_cndmask_b32 v34, v6, v34, s[50:51]')
    e.V('buffer_store_dwordx2 v[30:31], v34, s[40:43], 0 offen', ('st', 9))
    e.label('L_k2_done')
    e.I('s_endpgm')
    return e.finalize() + kd(name, 320, 256)

def check():
    for g in range(4864):
        assert (g * 28729) >> 21 == g // 73, g
    for g in range(5376):
        assert (g * 58255) >> 19 == g // 9, g
check()
```

```python
from asmlib import Em
from common import *

SLOT = 18496
NSLOT = 8
UP_OFF = 9248
K3_LDS = SLOT * NSLOT
D = 6
NF = 8
AHEAD = 6
XB = 32
HB = 176
FB = 208

def gu_block(t):
    return ('v', HB + 16 * t) if t < 5 else ('a', 16 * (t - 5))

def rng(k, b, n):
    return f'{k}[{b}:{b+n-1}]'

class Task:
    def __init__(self, ops, ready, deadline, kind='I'):
        self.ops = list(ops); self.ready = ready; self.deadline = deadline

def gen_k3(name='ffn_kernel', budgetA=2, budgetB=6, stamps=False, nodma=False, nobar=False, nonorm=False, D=6, AHEAD=6, dma_gap=1, pstamps=False, order=0):
    e = Em()
    def stamp(k):
        if stamps:
            e.I(f's_memtime s[{60+2*k}:{61+2*k}]')
    e.raw(head(name))
    e.I('s_cmp_ge_u32 s2, 256')
    e.I('s_cbranch_scc1 L_k3_done')
    stamp(0)
    if stamps:
        e.I('s_memrealtime s[80:81]')
    e.I('s_load_dwordx4 s[4:7], s[0:1], 32')
    e.I('s_load_dwordx2 s[28:29], s[0:1], 48')
    e.I('s_load_dwordx2 s[30:31], s[0:1], 72')
    e.I('v_lshrrev_b32 v1, 6, v0')
    e.I('v_readfirstlane_b32 s3, v1')
    e.I('v_and_b32 v1, 63, v0')
    e.I('s_and_b32 s24, s2, 7')
    e.I('s_lshl_b32 s24, s24, 1')
    e.I('s_lshr_b32 s25, s2, 3')
    e.I('s_and_b32 s25, s25, 1')
    e.I('s_add_u32 s24, s24, s25')
    e.I('s_lshr_b32 s25, s2, 4')
    e.I('s_mov_b32 s34, -1')
    e.I('s_mov_b32 s35, 0')
    e.I('s_and_b32 s36, s3, 1')
    e.I('s_lshr_b32 s37, s3, 1')
    e.I('s_mul_i32 s26, s37, %d' % UP_OFF)
    e.I('s_mul_i32 s38, s36, 4608')
    e.I('s_add_u32 s26, s26, s38')
    e.I('s_mul_i32 s27, s3, 4608')
    e.I('s_mul_i32 s38, s36, %d' % (8 * 9216))
    e.I('s_mul_i32 s39, s24, 576')
    e.I('s_add_u32 s38, s38, s39')
    e.I('s_mul_i32 s39, s3, %d' % (8 * 1152))
    e.I('s_mul_i32 s40, s24, %d' % (288 * 1152))
    e.I('s_add_u32 s39, s39, s40')
    e.I('s_mov_b32 s41, 9216')
    e.I('s_mov_b32 s42, 1152')
    for j in range(5):
        e.I(f'v_add_u32 v24, {64*j}, v1')
        e.I('v_mul_u32_u24 v25, 1821, v24')
        e.I('v_lshrrev_b32 v25, 16, v25')
        e.I('v_mul_u32_u24 v26, 36, v25')
        e.I('v_sub_u32 v26, v24, v26')
        e.I('v_lshlrev_b32 v26, 4, v26')
        jo = 1024 * min(j, 3)
        e.I(f'v_mad_u32_u24 v{2+j}, v25, s41, v26')
        e.I(f'v_add_u32 v{2+j}, s38, v{2+j}')
        e.I(f'v_mad_u32_u24 v{7+j}, v25, s42, v26')
        e.I(f'v_add_u32 v{7+j}, s39, v{7+j}')
        if jo:
            e.I(f'v_subrev_u32 v{2+j}, {jo}, v{2+j}')
            e.I(f'v_subrev_u32 v{7+j}, {jo}, v{7+j}')
    e.I('s_lshl_b32 s43, s25, 2')
    e.I('s_add_u32 s43, s43, s3')
    e.I('s_mul_i32 s43, s43, %d' % (36 * 1024))
    e.I('v_lshlrev_b32 v23, 4, v1')
    e.I('v_add_u32 v23, s43, v23')
    e.I('s_waitcnt lgkmcnt(0)')
    if pstamps: stamp(3)
    e.I('s_cmp_eq_u32 s37, 0')
    e.I('s_cselect_b32 s8, s4, s6')
    e.I('s_cselect_b32 s9, s5, s7')
    e.I('s_and_b32 s9, s9, 0xffff')
    e.I('s_mov_b32 s10, %d' % (576 * 4608 * 2))
    e.I('s_mov_b32 s11, 0x00020000')
    srd(e, 12, 28, 29, 4608 * 576 * 2)
    srd_off(e, 16, 30, 31, WS_H, ACT_BYTES)
    e.I('s_mul_i32 s45, s24, %d' % ACT_BYTES)
    e.I('s_add_u32 s45, s45, %d' % WS_P)
    srd_off(e, 20, 30, 31, 's45', ACT_BYTES)

    NU = 54
    def dma_ops(u):
        slot = (u % NSLOT) * SLOT
        ops = []
        if u < 36:
            so, wofs, vb, sr = u * 16 * 9216, 's26', 2, 8
        else:
            uu = u - 36
            hf, kb = uu // 9, uu % 9
            so, wofs, vb, sr = kb * 32 * 1152 + hf * 576, 's27', 7, 12
        ops.append(('I', f's_mov_b32 s32, {so}'))
        ops.append(('I', f's_add_u32 m0, {wofs}, {slot}'))
        for j in range(4):
            ops.append(('V', f'buffer_load_dwordx4 v{vb+j}, s[{sr}:{sr+3}], s32 offen offset:{1024*j} lds', ('dma', u)))
        ops.append(('I', f's_add_u32 m0, {wofs}, {slot + 1024}'))
        ops.append(('X', f'buffer_load_dwordx4 v{vb+4}, s[{sr}:{sr+3}], s32 offen offset:3072 lds', ('dma', u)))
        return ops

    def emit_op(op):
        if op[0] == 'I':
            e.I(op[1])
        elif op[0] == 'V':
            e.V(op[1], op[2])
        elif op[0] == 'X':
            e.I('s_mov_b64 exec, s[34:35]')
            e.V(op[1], op[2])
            e.I('s_mov_b64 exec, -1')

    for op in dma_ops(0):
        emit_op(op)
    if pstamps: stamp(4)
    for s in range(36):
        if s % 4 == 0:
            e.I(f's_mov_b32 s47, {s*1024}')
        e.V(f'buffer_load_dwordx4 v[{XB+4*s}:{XB+4*s+3}], v23, s[16:19], s47 offen offset:{1024*(s%4)}', ('x', s))
    if pstamps: stamp(5)
    if pstamps:
        e.wait_vm(('x', 0))
        stamp(6)
        e.wait_vm(('x', 35))
        stamp(7)
    for u in range(1, AHEAD):
        for op in dma_ops(u):
            emit_op(op)
    e.I('v_and_b32 v24, 3, v1')
    e.I('v_bfe_u32 v25, v1, 2, 2')
    e.I('v_bfe_u32 v26, v1, 4, 1')
    e.I('v_lshrrev_b32 v27, 5, v1')
    e.I('v_lshlrev_b32 v28, 3, v27')
    e.I('v_add_u32 v28, v28, v25')
    e.I('v_mul_u32_u24 v28, 576, v28')
    e.I('v_lshrrev_b32 v29, 1, v24')
    e.I(f'v_mul_u32_u24 v30, {UP_OFF}, v29')
    e.I('v_add_u32 v28, v28, v30')
    e.I('v_lshlrev_b32 v30, 4, v26')
    e.I('v_add_u32 v28, v28, v30')
    e.I('v_and_b32 v31, 1, v24')
    e.I('v_lshlrev_b32 v30, 3, v31')
    e.I('v_add_u32 v12, v28, v30')
    e.I('v_lshlrev_b32 v28, 2, v27')
    e.I('v_add_u32 v28, v28, v25')
    e.I('v_mul_u32_u24 v28, 576, v28')
    e.I('v_lshlrev_b32 v30, 5, v26')
    e.I('v_add_u32 v28, v28, v30')
    e.I('v_lshlrev_b32 v30, 4, v31')
    e.I('v_add_u32 v28, v28, v30')
    e.I('v_lshlrev_b32 v30, 3, v29')
    e.I('v_add_u32 v16, v28, v30')
    for p in range(1, 4):
        e.I(f'v_add_u32 v{12+p}, {2*SLOT*p}, v12')
        e.I(f'v_add_u32 v{16+p}, {2*SLOT*p}, v16')
    e.I('s_lshl_b32 s46, s25, 2')
    e.I('s_add_u32 s46, s46, s3')
    e.I('s_mul_i32 s46, s46, %d' % (36 * 1024))
    e.I('v_lshlrev_b32 v20, 4, v1')
    e.I('v_add_u32 v20, s46, v20')

    stamp(1)
    ln_stats(e, XB, HB, 21, 22, [('x', s) for s in range(36)])
    for s in range(2):
        for op in ln_norm_ops(XB, s, 24, 25, 21, 22):
            e.I(op)

    mf = []
    for u in range(36):
        for t in range(18):
            mf.append(dict(u=u, ph='A', s=u, t=t))
    for uu in range(18):
        hf, kb = uu // 9, uu % 9
        for ks in range(2):
            for t in range(9):
                mf.append(dict(u=36 + uu, ph='B', hf=hf, s=2 * kb + ks, ks=ks, t=t))
    NM = len(mf)
    first_of_unit = {}
    for i, m in enumerate(mf):
        first_of_unit.setdefault(m['u'], i)

    def frag_reads(i):
        m = mf[i]
        f = FB + 4 * (i % NF)
        sl = m['u'] % NSLOT
        so = (sl % 2) * SLOT
        if m['ph'] == 'A':
            base = 12 + sl // 2
            o0 = so + 32 * m['t']; o1 = o0 + 4 * 576
        else:
            base = 16 + sl // 2
            o0 = so + 16 * m['ks'] * 576 + 64 * m['t']; o1 = o0 + 8 * 576
        e.L(f'ds_read_b64_tr_b16 a[{f}:{f+1}], v{base} offset:{o0}', ('f', i))
        e.L(f'ds_read_b64_tr_b16 a[{f+2}:{f+3}], v{base} offset:{o1}', ('f', i))

    tasks = []
    for s in range(2, 36 if not nonorm else 2):
        tasks.append(Task([('I', o) for o in ln_norm_ops(XB, s, 24, 25, 21, 22)], 0, first_of_unit[s]))
    def glu_ops(t):
        k, b = gu_block(t)
        ops = []
        hh = HB + 4 * t
        for hq in range(2):
            g = [b + 8 * hq + c for c in range(4)]
            u = [b + 8 * hq + 4 + c for c in range(4)]
            T = [24, 25, 26, 27]
            U = [28, 29, 30, 31]
            if k == 'a':
                for c in range(4):
                    ops.append(f'v_accvgpr_read_b32 v{T[c]}, a{g[c]}')
                for c in range(4):
                    ops.append(f'v_accvgpr_read_b32 v{U[c]}, a{u[c]}')
                gs = [f'v{x}' for x in T]; us = [f'v{x}' for x in U]
            else:
                gs = [f'v{x}' for x in g]; us = [f'v{x}' for x in u]
            for c in range(4):
                ops.append(f'v_mul_f32 v{T[c]}, {NLOG2E:#x}, {gs[c]}')
            for c in range(4):
                ops.append(f'v_exp_f32 v{T[c]}, v{T[c]}')
            for c in range(4):
                ops.append(f'v_add_f32 v{T[c]}, 1.0, v{T[c]}')
            for c in range(4):
                ops.append(f'v_rcp_f32 v{T[c]}, v{T[c]}')
            for c in range(4):
                ops.append(f'v_mul_f32 v{T[c]}, v{T[c]}, {us[c]}')
            ops.append(f'v_cvt_pk_bf16_f32 v{hh+2*hq}, v{T[0]}, v{T[1]}')
            ops.append(f'v_cvt_pk_bf16_f32 v{hh+2*hq+1}, v{T[2]}, v{T[3]}')
        return ops
    firstB = first_of_unit[36]
    for t in range(18):
        tasks.append(Task([('I', o) for o in glu_ops(t)], 35 * 18 + t + 4, firstB + 9 * t))
    def store_ops(kind, b, half, t, tmp=None):
        ops = []
        for q in range(2):
            r = b + 8 * q
            if kind == 'a':
                for c in range(8):
                    ops.append(('I', f'v_accvgpr_read_b32 v{tmp+8*q+c}, a{r+c}'))
                r = tmp + 8 * q
            for c in range(4):
                ops.append(('I', f'v_cvt_pk_bf16_f32 v{r+c}, v{r+2*c}, v{r+2*c+1}'))
            ops.append(('I', f's_mov_b32 s33, {((half*9+t)*2+q)*1024}'))
            ops.append(('V', f'buffer_store_dwordx4 v[{r}:{r+3}], v20, s[20:23], s33 offen', ('st', half, t, q)))
        return ops
    firstH1 = first_of_unit[45]
    for t in range(9):
        tasks.append(Task(store_ops('v', XB + 16 * t, 0, t), firstH1 - 9 + t + 4, NM - 20 + t))

    dma_q = []

    def run_fillers(i, budget):
        for tk in tasks:
            if tk.ops and tk.deadline <= i:
                while tk.ops:
                    emit_op(tk.ops.pop(0))
        n = 0
        while dma_q and n < 1 and i % dma_gap == 0:
            op = dma_q.pop(0)
            emit_op(op)
            if op[0] in 'VX':
                n += 1
        cand = sorted([tk for tk in tasks if tk.ops and tk.ready <= i], key=lambda tk: tk.deadline)
        for tk in cand:
            while tk.ops and budget > 0:
                emit_op(tk.ops.pop(0)); budget -= 1
            if budget <= 0:
                break

    def barrier_for(u):
        e.wait_vm(('dma', u))
        if not nobar:
            e.I('s_barrier')
        if u + AHEAD < NU and not nodma:
            dma_q.extend(dma_ops(u + AHEAD))

    stamp(2)
    barrier_for(0)
    for i in range(D):
        frag_reads(i)
    for i in range(NM):
        m = mf[i]
        j = i + D
        if i in (18, 18*18, firstB, firstH1) and not pstamps:
            stamp({18:3, 18*18:4, firstB:5, firstH1:6}[i])
        if j < NM:
            if first_of_unit[mf[j]['u']] == j:
                while dma_q:
                    emit_op(dma_q.pop(0))
                barrier_for(mf[j]['u'])
            frag_reads(j)
        run_fillers(i, budgetA if i < 35 * 18 else budgetB)
        e.wait_lg(('f', i))
        f = FB + 4 * (i % NF)
        if m['ph'] == 'A':
            k, b = gu_block(m['t'])
            acc = rng(k, b, 16)
            c = acc if m['s'] > 0 else '0'
            e.I(f'v_mfma_f32_32x32x16_bf16 {acc}, a[{f}:{f+3}], v[{XB+4*m["s"]}:{XB+4*m["s"]+3}], {c}')
        else:
            acc = rng('v', XB + 16 * m['t'], 16) if m['hf'] == 0 else rng('a', 16 * m['t'], 16)
            c = acc if m['s'] > 0 else '0'
            hh = HB + 4 * m['s']
            e.I(f'v_mfma_f32_32x32x16_bf16 {acc}, a[{f}:{f+3}], v[{hh}:{hh+3}], {c}')
    for tk in tasks:
        while tk.ops:
            emit_op(tk.ops.pop(0))
    if not pstamps: stamp(7)
    for t in range(9):
        for op in store_ops('a', 16 * t, 1, t, tmp=XB + 16 * t):
            emit_op(op)
    if stamps:
        e.I('s_waitcnt vmcnt(0)')
        stamp(8)
        e.I('s_waitcnt lgkmcnt(0)')
        e.I('s_load_dwordx2 s[90:91], s[0:1], 72')
        e.I('s_waitcnt lgkmcnt(0)')
        srd_off(e, 92, 90, 91, 200 << 20, 1 << 20)
        e.I('s_lshl_b32 s96, s2, 2')
        e.I('s_add_u32 s96, s96, s3')
        e.I('s_lshl_b32 s96, s96, 6')
        e.I('v_mov_b32 v1, 0')
        e.I('s_memrealtime s[78:79]')
        e.I('s_waitcnt lgkmcnt(0)')
        e.I('s_sub_u32 s78, s78, s80')
        e.I('s_add_u32 s78, s78, s60')
        for k in range(10):
            e.I(f's_sub_u32 s97, s{60+2*k}, s60')
            e.I('v_mov_b32 v2, s97')
            e.I(f'buffer_store_dword v2, v1, s[92:95], s96 offen offset:{4*k}')
    e.label('L_k3_done')
    e.I('s_endpgm')
    return e.finalize() + kd(name, 512, 256)


def gen_k4(name='red_kernel'):
    e = Em()
    e.raw(head(name))
    e.I('s_cmp_ge_u32 s2, 576')
    e.I('s_cbranch_scc1 L_k4_done')
    e.I('s_load_dwordx2 s[4:5], s[0:1], 56')
    e.I('s_load_dwordx2 s[6:7], s[0:1], 72')
    e.I('v_lshrrev_b32 v1, 6, v0')
    e.I('v_readfirstlane_b32 s3, v1')
    e.I('v_and_b32 v1, 63, v0')
    e.I('s_lshl_b32 s20, s2, 2')
    e.I('s_add_u32 s20, s20, s3')
    e.I('s_mul_i32 s21, s20, 1821')
    e.I('s_lshr_b32 s21, s21, 16')
    e.I('s_mul_i32 s22, s21, 36')
    e.I('s_sub_u32 s22, s20, s22')
    e.I('s_lshl_b32 s23, s20, 10')
    e.I('v_lshlrev_b32 v2, 4, v1')
    e.I('v_add_u32 v2, s23, v2')
    e.I('s_lshl_b32 s24, s21, 5')
    e.I('v_and_b32 v3, 31, v1')
    e.I('v_add_u32 v3, s24, v3')
    e.I('v_mul_u32_u24 v3, 1152, v3')
    e.I('v_lshrrev_b32 v4, 5, v1')
    e.I('v_lshlrev_b32 v4, 4, v4')
    e.I('v_add_u32 v3, v3, v4')
    e.I('s_lshl_b32 s25, s22, 5')
    e.I('v_add_u32 v3, s25, v3')
    e.I('s_waitcnt lgkmcnt(0)')
    srd(e, 8, 4, 5, ACT_BYTES)
    srd_off(e, 12, 6, 7, WS_H, ACT_BYTES)
    srd_off(e, 16, 6, 7, WS_P, 16 * ACT_BYTES)
    e.V('buffer_load_dwordx4 v[8:11], v2, s[12:15], 0 offen', 'h')
    for j in range(16):
        e.I(f's_mov_b32 s26, {j*ACT_BYTES}')
        e.V(f'buffer_load_dwordx4 v[{12+4*j}:{15+4*j}], v2, s[16:19], s26 offen', ('p', j))
    e.wait_vm('h')
    for c in range(4):
        e.I(f'v_lshlrev_b32 v{80+2*c}, 16, v{8+c}')
        e.I(f'v_and_b32 v{81+2*c}, 0xffff0000, v{8+c}')
    for j in range(16):
        e.wait_vm(('p', j))
        for c in range(4):
            r = 12 + 4 * j + c
            e.I(f'v_lshlrev_b32 v88, 16, v{r}')
            e.I(f'v_and_b32 v89, 0xffff0000, v{r}')
            e.I(f'v_add_f32 v{80+2*c}, v{80+2*c}, v88')
            e.I(f'v_add_f32 v{81+2*c}, v{81+2*c}, v89')
    for c in range(4):
        e.I(f'v_cvt_pk_bf16_f32 v{90+c}, v{80+2*c}, v{81+2*c}')
    e.V('buffer_store_dwordx4 v[90:93], v3, s[8:11], 0 offen', 'st')
    e.label('L_k4_done')
    e.I('s_endpgm')
    return e.finalize() + kd(name, 96, 96)

if __name__ == '__main__':
    for q in range(320):
        assert (q * 1821) >> 16 == q // 36
    for q in range(2304):
        assert (q * 1821) >> 16 == q // 36, q
    hdr = f"""; @launch kernel=ffn_kernel grid=(256,1,1) block=(256,1,1) lds={K3_LDS}
; @launch kernel=red_kernel grid=(576,1,1) block=(256,1,1) lds=0
.amdgcn_target "amdgcn-amd-amdhsa--gfx950"
.text
"""
    import sys
    variants = {
        'k34': dict(),
        'k34_p': dict(pstamps=True),
        'k34_nodma': dict(nodma=True),
        'k34_nodma_nobar': dict(nodma=True, nobar=True),
        'k34_nonorm': dict(nonorm=True),
        'k34_gap3': dict(dma_gap=3),
        'k34_d4': dict(D=4),
    }
    for nm, kw in variants.items():
        open(f'dev/{nm}.s', 'w').write(hdr + gen_k3(stamps=True, **kw) + gen_k4())
```

```python
import sys
from build import build
ref = open('sequential_preLN__linear_attn_block__glu_gated_glu__prompt.s.ref').read()
hdr = ''.join(l + '\n' for l in ref.splitlines() if l.startswith(';') and '@launch' not in l and 'Override' not in l and 'grid=ceil' not in l)
out = sys.argv[1] if len(sys.argv) > 1 else 'sequential_preLN__linear_attn_block__glu_gated_glu__prompt.s'
import json
kw = json.loads(sys.argv[2]) if len(sys.argv) > 2 else {}
build(out, header_comment=hdr, **kw)
```

```python
import sys
from k1v4 import gen_k1, K1_LDS
from k2v2 import gen_k2, K2_LDS
from k3 import gen_k4
from k3v2 import gen_k3, K3_LDS
def build(path, k3kw=None, header_comment='', stamps=False, k1kw=None):
    hdr = header_comment + f"""; @launch kernel=qkv_kernel grid=(256,1,1) block=(256,1,1) lds={K1_LDS}
; @launch kernel=attn_kernel grid=(256,1,1) block=(512,1,1) lds={K2_LDS}
; @launch kernel=ffn_kernel grid=(256,1,1) block=(256,1,1) lds={K3_LDS}
; @launch kernel=red_kernel grid=(576,1,1) block=(256,1,1) lds=0
.amdgcn_target "amdgcn-amd-amdhsa--gfx950"
.text
"""
    open(path, 'w').write(hdr + gen_k1(stamps=stamps, **(k1kw or {})) + gen_k2(stamps=stamps) + gen_k3(**(k3kw or {})) + gen_k4() + 'L_code_end:\n    s_endpgm\n')
if __name__ == '__main__':
    import os
    build('dev/' + os.environ.get('OUT', 'full.s'), stamps=True, k3kw=dict(stamps=True))
    if os.environ.get('K1EXP'):
        for nm, kw in (('e_nodot', dict(nodot=True)), ('e_nodma', dict(nodma=True)), ('e_nodotdma', dict(nodot=True, nodma=True))):
            build(f'dev/{nm}.s', stamps=True, k1kw=kw, k3kw=dict(stamps=True))
```

```python
WS_KV = 0
KV_HEAD_BYTES = 19 * 24 * 4
WS_PQ = 0x20000
ACT_BYTES = 2048 * 576 * 2
PQ_PITCH = 1168
PQ_BYTES = 2048 * PQ_PITCH
WS_H = WS_PQ + 0x250000
WS_P = WS_H + ACT_BYTES
LOG2E = 0x3fb8aa3b
NLOG2E = 0xbfb8aa3b

def kd(name, vgpr, agpr_off, sgpr=102):
    return f""".section .rodata,"a"
.p2align 6
.amdhsa_kernel {name}
  .amdhsa_next_free_vgpr {vgpr}
  .amdhsa_next_free_sgpr {sgpr}
  .amdhsa_accum_offset {agpr_off}
  .amdhsa_group_segment_fixed_size 0
  .amdhsa_kernarg_size 80
  .amdhsa_user_sgpr_count 2
  .amdhsa_user_sgpr_kernarg_segment_ptr 1
  .amdhsa_system_sgpr_workgroup_id_x 1
.end_amdhsa_kernel
.text
"""

def head(name):
    return f""".globl {name}
.p2align 8
.type {name},@function
{name}:
"""

def srd(e, d, lo, hi, nbytes):
    e.I(f's_mov_b32 s{d}, s{lo}')
    e.I(f's_and_b32 s{d+1}, s{hi}, 0xffff')
    e.I(f's_mov_b32 s{d+2}, {nbytes}')
    e.I(f's_mov_b32 s{d+3}, 0x00020000')

def srd_off(e, d, lo, hi, off, nbytes):
    e.I(f's_add_u32 s{d}, s{lo}, {off}')
    e.I(f's_addc_u32 s{d+1}, s{hi}, 0')
    e.I(f's_and_b32 s{d+1}, s{d+1}, 0xffff')
    e.I(f's_mov_b32 s{d+2}, {nbytes}')
    e.I(f's_mov_b32 s{d+3}, 0x00020000')

def ln_stats(e, XB, T, vrstd, vnb, tags, group=6):
    for i in range(8):
        e.I(f'v_mov_b32 v{T+i}, 0')
    e.I(f'v_mov_b32 v{T+8}, 0x3f803f80')
    for s in range(36):
        if s % group == 0:
            e.wait_vm(tags[min(s + group - 1, 35)])
        for j in range(4):
            r = XB + 4 * s + j
            e.I(f'v_dot2_f32_bf16 v{T+j}, v{r}, v{T+8}, v{T+j}')
            e.I(f'v_dot2_f32_bf16 v{T+4+j}, v{r}, v{r}, v{T+4+j}')
    e.I(f'v_add_f32 v{T}, v{T}, v{T+1}')
    e.I(f'v_add_f32 v{T+2}, v{T+2}, v{T+3}')
    e.I(f'v_add_f32 v{T+4}, v{T+4}, v{T+5}')
    e.I(f'v_add_f32 v{T+6}, v{T+6}, v{T+7}')
    e.I(f'v_add_f32 v{T}, v{T}, v{T+2}')
    e.I(f'v_add_f32 v{T+4}, v{T+4}, v{T+6}')
    e.I(f'v_mov_b32 v{T+1}, v{T}')
    e.I(f'v_mov_b32 v{T+5}, v{T+4}')
    e.I(f'v_permlane32_swap_b32 v{T}, v{T+1}')
    e.I(f'v_permlane32_swap_b32 v{T+4}, v{T+5}')
    e.I(f'v_add_f32 v{T}, v{T}, v{T+1}')
    e.I(f'v_add_f32 v{T+4}, v{T+4}, v{T+5}')
    inv = 0x3ae38e39
    e.I(f'v_mul_f32 v{T}, {inv:#x}, v{T}')
    e.I(f'v_mul_f32 v{T+4}, {inv:#x}, v{T+4}')
    e.I(f'v_fma_f32 v{T+4}, -v{T}, v{T}, v{T+4}')
    e.I(f'v_max_f32 v{T+4}, 0, v{T+4}')
    e.I(f'v_add_f32 v{T+4}, 0x3727c5ac, v{T+4}')
    e.I(f'v_rsq_f32 v{vrstd}, v{T+4}')
    e.I(f'v_mul_f32 v{vnb}, v{T}, v{vrstd}')
    e.I(f'v_sub_f32 v{vnb}, 0, v{vnb}')

def ln_norm_ops(XB, s, t0, t1, vrstd, vnb):
    ops = []
    for j in range(4):
        r = XB + 4 * s + j
        a, b = (t0, t1) if j % 2 == 0 else (t0 + 2, t1 + 2)
        ops.append(f'v_lshlrev_b32 v{a}, 16, v{r}')
        ops.append(f'v_and_b32 v{b}, 0xffff0000, v{r}')
        ops.append(f'v_fma_f32 v{a}, v{a}, v{vrstd}, v{vnb}')
        ops.append(f'v_fma_f32 v{b}, v{b}, v{vrstd}, v{vnb}')
        ops.append(f'v_cvt_pk_bf16_f32 v{r}, v{a}, v{b}')
    return ops

WS_ST = 0xF000
WS_STATS = WS_P + 16 * ACT_BYTES
STATS_BYTES = 2048 * 128
OOB = 0x7ff00000

import os
STAMP_OP = os.environ.get('STAMP_OP', 's_memtime')
class Stamps:
    def __init__(self, e, on, region):
        self.e, self.on, self.region, self.n = e, on, region, 0
    def __call__(self, k):
        if self.on:
            self.e.I(f'{STAMP_OP} s[{64+2*k}:{65+2*k}]')
            if k == 0:
                self.e.I('s_memrealtime s[86:87]')
            self.n = max(self.n, k + 1)
    def dump(self):
        if not self.on:
            return
        e = self.e
        e.I('s_waitcnt vmcnt(0)')
        k = self.n
        e.I(f'{STAMP_OP} s[{64+2*k}:{65+2*k}]')
        e.I('s_memrealtime s[88:89]')
        e.I('s_load_dwordx2 s[90:91], s[0:1], 72')
        e.I('s_waitcnt lgkmcnt(0)')
        srd_off(e, 92, 90, 91, (200 << 20) + self.region * 131072, 131072)
        e.I('s_lshl_b32 s96, s2, 3')
        e.I('s_add_u32 s96, s96, s3')
        e.I('s_lshl_b32 s96, s96, 6')
        e.I('v_mov_b32 v1, 0')
        for j in range(k + 1):
            e.I(f's_sub_u32 s97, s{64+2*j}, s64')
            e.I('v_mov_b32 v2, s97')
            e.I(f'buffer_store_dword v2, v1, s[92:95], s96 offen offset:{4*j}')
        e.I('s_sub_u32 s97, s88, s86')
        e.I('v_mov_b32 v2, s97')
        e.I('buffer_store_dword v2, v1, s[92:95], s96 offen offset:60')
        e.I('v_mov_b32 v2, s86')
        e.I('buffer_store_dword v2, v1, s[92:95], s96 offen offset:56')
```

```python
from asmlib import Em
from common import *

XSL = 16 * 1040
NXS = 4
XPART = NXS * XSL
SL = 32 * 384
NS = 7
NU = 18
K1_LDS = XPART + NS * SL
KVP = 264
AC = 64
CS = 128
FB = 144
NF = 16
XF = 208

def gen_k1(name='qkv_kernel', D=7, stamps=False, prefetch=True, twait=False, PF0=125, PFS=2, nodot=False, nocs=False, nodma=False, PRO=3):
    e = Em()
    st = Stamps(e, stamps, 0)
    e.raw(head(name))
    e.I('s_cmp_ge_u32 s2, 256')
    e.I('s_cbranch_scc1 L_k1_done')
    st(0)
    e.I('s_load_dwordx4 s[4:7], s[0:1], 0')
    e.I('s_load_dwordx4 s[28:31], s[0:1], 64')
    e.I('s_load_dwordx2 s[56:57], s[0:1], 16')
    e.I('s_load_dwordx4 s[76:79], s[0:1], 32')
    e.I('s_load_dwordx2 s[80:81], s[0:1], 48')
    e.I('s_getpc_b64 s[52:53]')
    e.label('L_k1_pc')
    e.I('s_lshr_b32 s26, s2, 3')
    e.I('s_lshl_b32 s54, s26, 5')
    e.I('v_add_u32 v251, s54, v0')
    e.I('v_lshlrev_b32 v251, 7, v251')
    e.I('v_cmp_gt_u32 vcc, 32, v0')
    e.I('v_min_u32 v251, L_code_end-L_k1_pc-4, v251')
    e.I('s_and_saveexec_b64 s[58:59], vcc')
    e.I('s_cbranch_execz L_k1_nopf')
    e.I('global_load_dword v252, v251, s[52:53]')
    e.label('L_k1_nopf')
    e.I('s_mov_b64 exec, -1')
    e.I('s_mul_i32 s47, s26, 288')
    e.I('s_and_b32 s48, s2, 1')
    e.I('s_mul_i32 s48, s48, 9216')
    e.I('s_add_u32 s47, s47, s48')
    e.I('v_add_u32 v4, s47, v0')
    e.I('v_lshlrev_b32 v4, 7, v4')
    e.I(f'v_mov_b32 v6, {OOB}')
    e.I('v_add_u32 v7, 0x8000, v4')
    e.I('v_cndmask_b32 v7, v6, v7, vcc')
    e.I('s_mul_i32 s47, s26, 162')
    e.I('v_cmp_gt_u32 vcc, 162, v0')
    e.I('v_min_u32 v5, 161, v0')
    e.I('v_add_u32 v5, s47, v5')
    e.I('v_mul_u32_u24 v11, 58255, v5')
    e.I('v_lshrrev_b32 v11, 19, v11')
    e.I('v_mul_u32_u24 v8, 9, v11')
    e.I('v_sub_u32 v8, v5, v8')
    e.I('v_mul_u32_u24 v9, 11, v8')
    e.I('v_lshrrev_b32 v9, 5, v9')
    e.I('v_mul_u32_u24 v10, 3, v9')
    e.I('v_sub_u32 v8, v8, v10')
    e.I('v_mul_u32_u24 v11, 3456, v11')
    e.I('v_mul_u32_u24 v9, 1152, v9')
    e.I('v_lshl_add_u32 v11, v8, 7, v11')
    e.I('s_bfe_u32 s48, s2, 0x20001')
    e.I('s_mul_i32 s48, s48, 288')
    e.I('s_and_b32 s48, s48, 0xff80')
    e.I('v_add3_u32 v5, v11, v9, s48')
    e.I('v_cndmask_b32 v5, v6, v5, vcc')
    e.I('v_lshrrev_b32 v1, 6, v0')
    e.I('v_readfirstlane_b32 s3, v1')
    e.I('v_and_b32 v1, 63, v0')
    e.I('s_waitcnt lgkmcnt(0)')
    srd(e, 8, 4, 5, ACT_BYTES)
    srd(e, 12, 6, 7, 576 * 1728 * 2)
    e.V('buffer_load_dword v252, v4, s[8:11], 0 offen', 'pf')
    e.V('buffer_load_dword v252, v5, s[12:15], 0 offen', 'pf')
    e.V('buffer_load_dword v252, v7, s[8:11], 0 offen', 'pf')
    if twait:
        e.I('s_waitcnt vmcnt(0)')
        st(6)
    e.I('s_and_b32 s24, s2, 1')
    e.I('s_lshl_b32 s24, s24, 3')
    e.I('s_and_b32 s27, s26, 7')
    e.I('s_add_u32 s24, s24, s27')
    e.I('s_bfe_u32 s25, s2, 0x20001')
    e.I('s_lshl_b32 s25, s25, 2')
    e.I('s_lshr_b32 s26, s26, 3')
    e.I('s_add_u32 s25, s25, s26')
    e.I('s_lshl_b32 s32, s24, 7')
    e.I('s_lshl_b32 s33, s3, 5')
    e.I('s_add_u32 s32, s32, s33')
    e.I('v_and_b32 v2, 31, v1')
    e.I('v_lshrrev_b32 v3, 5, v1')
    e.I('v_lshrrev_b32 v8, 3, v1')
    e.I('v_bfe_u32 v9, v1, 4, 1')
    e.I('v_lshlrev_b32 v9, 2, v9')
    e.I('v_and_b32 v10, 7, v1')
    e.I('v_xor_b32 v10, v10, v9')
    e.I('v_mul_u32_u24 v8, 1152, v8')
    e.I('v_lshl_add_u32 v4, v10, 4, v8')
    for i in range(1, 4):
        e.I(f'v_add_u32 v{4+i}, {i*8*1152}, v4')
    e.I('s_mul_i32 s44, s32, 1152')
    for i in range(3):
        e.I(f'v_add_u32 v12, {64*i}, v1')
        e.I('v_mul_u32_u24 v13, 2731, v12')
        e.I('v_lshrrev_b32 v13, 16, v13')
        e.I('v_mul_u32_u24 v14, 24, v13')
        e.I('v_sub_u32 v14, v12, v14')
        e.I('v_bfe_u32 v15, v13, 1, 1')
        e.I('v_lshlrev_b32 v15, 2, v15')
        e.I('v_xor_b32 v14, v14, v15')
        e.I('v_lshrrev_b32 v15, 3, v14')
        e.I('v_and_b32 v14, 7, v14')
        e.I('v_mul_u32_u24 v15, 1152, v15')
        e.I('v_lshl_add_u32 v15, v14, 4, v15')
        e.I('v_mul_u32_u24 v13, 3456, v13')
        e.I(f'v_add_u32 v{8+i}, v13, v15')
    e.I('s_mul_i32 s34, s25, 72')
    e.I('s_and_b32 s39, s34, 63')
    e.I('s_and_b32 s34, s34, 0xffc0')
    e.I('s_mul_i32 s35, s3, %d' % (8 * 3456))
    e.I('s_add_u32 s35, s35, s34')
    e.I('s_mul_i32 s36, s3, %d' % (4 * 1040))
    e.I('s_mul_i32 s38, s3, 3072')
    e.I(f's_add_u32 s38, s38, {XPART}')
    def dma_ops(u):
        sl = (u % NS) * SL
        ops = []
        if u % 2 == 0:
            xs = ((u // 2) % NXS) * XSL
            for i in range(4):
                ops.append(('I', f's_add_u32 m0, s36, {xs + i*1040}'))
                ops.append(('V', f'buffer_load_dwordx4 v{4+i}, s[8:11], s44 offen lds', ('d', u)))
            ops.append(('I', 's_add_u32 s44, s44, 128'))
        for i in range(3):
            ops.append(('I', f's_add_u32 m0, s38, {sl + i*1024}'))
            ops.append(('V', f'buffer_load_dwordx4 v{8+i}, s[12:15], s35 offen lds', ('d', u)))
        ops.append(('I', f's_add_u32 s35, s35, {32*3456}'))
        return ops
    def emit(op):
        if op[0] == 'I':
            e.I(op[1])
        else:
            e.V(op[1], op[2])
    for u in range(PRO):
        for op in dma_ops(u):
            emit(op)
    srd_off(e, 16, 30, 31, WS_PQ, PQ_BYTES)
    srd_off(e, 20, 30, 31, WS_KV, 32 * KV_HEAD_BYTES)
    srd(e, 40, 28, 29, 256)
    e.I('s_lshl_b32 s37, s25, 2')
    e.I('v_mov_b32 v253, 1')
    e.I(f'v_mov_b32 v254, {OOB}')
    e.I('v_cmp_eq_u32 vcc, 0, v1')
    e.I('v_cndmask_b32 v254, v254, 0, vcc')
    e.I('s_cmp_lg_u32 s3, 3')
    e.I('s_cbranch_scc1 L_k1_noclaim')
    e.V('buffer_atomic_add v253, v254, s[40:43], s37 offen sc0', 'pf')
    e.label('L_k1_noclaim')
    st(1)
    e.I('v_and_b32 v12, 3, v1')
    e.I('v_bfe_u32 v13, v1, 2, 2')
    e.I('v_bfe_u32 v14, v1, 4, 1')
    e.I('v_lshl_add_u32 v15, v3, 3, v13')
    e.I('v_mul_u32_u24 v15, 384, v15')
    e.I(f'v_add_u32 v15, {XPART}, v15')
    e.I('v_lshl_add_u32 v26, v14, 2, v12')
    e.I('v_bfe_u32 v29, v13, 1, 1')
    e.I('v_lshlrev_b32 v29, 6, v29')
    e.I('s_lshl_b32 s45, s3, 3')
    for T in range(5):
        if T < 4:
            e.I(f'v_add_u32 v27, {8*T}, v26')
        else:
            e.I('v_add_u32 v27, s45, v26')
        e.I('v_min_u32 v27, 28, v27')
        e.I('v_mul_u32_u24 v28, 13, v27')
        e.I('v_lshrrev_b32 v28, 7, v28')
        e.I('v_mul_u32_u24 v30, 10, v28')
        e.I('v_sub_u32 v27, v27, v30')
        e.I('v_min_u32 v27, 8, v27')
        e.I('v_lshlrev_b32 v27, 3, v27')
        e.I('v_lshl_add_u32 v27, v28, 7, v27')
        e.I('v_add_u32 v27, s39, v27')
        e.I('v_xor_b32 v27, v27, v29')
        e.I(f'v_add_u32 v{16+T}, v27, v15')
        e.I(f'v_add_u32 v{21+T}, {4*SL}, v{16+T}')
    e.I('v_lshrrev_b32 v30, 3, v2')
    e.I('v_mul_u32_u24 v30, 1040, v30')
    e.I('v_and_b32 v31, 7, v2')
    e.I('v_lshl_add_u32 v30, v31, 7, v30')
    e.I('v_lshl_add_u32 v30, v3, 4, v30')
    e.I('v_add_u32 v30, s36, v30')
    e.I('v_bfe_u32 v31, v2, 1, 1')
    e.I('v_lshl_add_u32 v26, v31, 6, v30')
    e.I('v_xor_b32 v31, 1, v31')
    e.I('v_lshl_add_u32 v27, v31, 6, v30')
    if prefetch:
        e.I('s_and_b32 s82, s2, 7')
        e.I('s_lshr_b32 s83, s2, 3')
        e.I('s_lshl_b32 s83, s83, 2')
        e.I('s_add_u32 s83, s83, s3')
        e.I('s_mul_i32 s84, s83, 41')
        e.I('s_mul_i32 s85, s82, 1152')
        e.I('s_mul_i32 s55, s82, %d' % (576 * 1152))
        e.I('v_min_u32 v248, 40, v1')
        e.I('v_add_u32 v248, s84, v248')
        e.I('v_min_u32 v248, 5183, v248')
        e.I('v_mul_u32_u24 v249, 58255, v248')
        e.I('v_lshrrev_b32 v249, 19, v249')
        e.I('v_mul_u32_u24 v250, 9, v249')
        e.I('v_sub_u32 v250, v248, v250')
        e.I('v_mul_u32_u24 v249, 9216, v249')
        e.I('v_lshl_add_u32 v249, v250, 7, v249')
        e.I('v_add_u32 v249, s85, v249')
        e.I('v_lshlrev_b32 v248, 7, v248')
        e.I('v_add_u32 v250, s55, v248')
    e.I('v_mov_b32 v58, 0')
    pf_ops = {PF0 - 1: 'buffer_load_dword v59, v58, s[40:43], s37 offen offset:64 sc0 sc1'}
    if prefetch:
        pf_ops.update({PF0: 'global_load_dword v244, v248, s[56:57]', PF0 + PFS: 'global_load_dword v245, v249, s[76:77]',
              PF0 + 2 * PFS: 'global_load_dword v246, v249, s[78:79]'})
    for i in range(4):
        e.I(f'v_mov_b32 v{32+i}, 0x3f803f80')
    e.I('v_cmp_le_u32 s[60:61], 24, v2')
    NM = 36 * 5
    GR = 224
    def reads(i):
        s, T = i // 5, i % 5
        u, ks = s // 2, s % 2
        sl = u % NS
        so = (sl % 4) * SL
        if T == 0:
            x = XF + 4 * (s % 4)
            xs = ((s // 4) % NXS) * XSL
            e.L(f'ds_read_b128 v[{x}:{x+3}], v{26 + (s % 4) // 2} offset:{xs + (s % 2)*32}', ('f', i))
        f = FB + 4 * (i % NF)
        base = (16, 21)[sl // 4] + T
        o = so + ks * 16 * 384
        e.L(f'ds_read_b64_tr_b16 v[{f}:{f+1}], v{base} offset:{o}', ('f', i))
        e.L(f'ds_read_b64_tr_b16 v[{f+2}:{f+3}], v{base} offset:{o+4*384}', ('f', i))
    dq = []
    def barrier(u):
        while dq and any(op[0] == 'V' and op[2][1] <= u + 1 for op in dq):
            emit(dq.pop(0))
        e.wait_vm(('d', u))
        e.I('s_barrier')
        if u >= 2 and u + NS - 2 < NU and not nodma:
            dq.extend(dma_ops(u + NS - 2))
    def zero_init():
        e.I('s_cmp_lg_u32 s3, 3')
        e.I('s_cbranch_scc1 L_k1_noinit')
        e.I('v_readfirstlane_b32 s45, v253')
        e.I('s_cmp_lg_u32 s45, 0')
        e.I('s_cbranch_scc1 L_k1_noinit')
        e.I('s_mul_i32 s45, s25, %d' % (2 * KV_HEAD_BYTES))
        e.I('v_lshlrev_b32 v255, 4, v1')
        e.I('v_cmp_gt_u32 vcc, 36, v1')
        e.I(f'v_mov_b32 v60, {OOB}')
        e.I('v_cndmask_b32 v60, v60, v255, vcc')
        for i in range(4):
            e.I(f'v_mov_b32 v{240+i}, 0')
        for i in range(4):
            e.I(f'buffer_store_dwordx4 v[240:243], v{255 if i < 3 else 60}, s[20:23], s45 offen offset:{1024*i} sc0 sc1')
        e.I('s_waitcnt vmcnt(0)')
        e.I('v_mov_b32 v253, 1')
        e.I('buffer_atomic_add v253, v254, s[40:43], s37 offen offset:64')
        e.label('L_k1_noinit')
    barrier(0)
    for u in range(PRO, NS):
        dq.extend(dma_ops(u))
    for i in range(D):
        reads(i)
    pend = []
    for i in range(NM):
        s, T = i // 5, i % 5
        j = i + D
        n = 0
        while dq and n < 3:
            op = dq.pop(0); emit(op); n += 1
        if j < NM:
            if j % 10 == 0:
                barrier(j // 10)
                if j // 10 == NS:
                    zero_init()
            reads(j)
        if i in pf_ops:
            e.V(pf_ops[i], ('pfl', i))
        e.wait_lg(('f', i))
        x = XF + 4 * (s % 4)
        f = FB + 4 * (i % NF)
        if T == 3:
            for c in range(4):
                e.I(f'v_cndmask_b32 v{f+c}, v{f+c}, v32, s[60:61]')
        if T < 4:
            acc = f'v[{AC+16*T}:{AC+16*T+15}]'
            e.I(f'v_mfma_f32_32x32x16_bf16 {acc}, v[{f}:{f+3}], v[{x}:{x+3}], {acc if s else "0"}')
        else:
            acc = f'v[{CS}:{CS+15}]'
            e.I(f'v_mfma_f32_32x32x16_bf16 {acc}, v[{f}:{f+3}], v[32:35], {acc if s else "0"}')
        if T == 2:
            acc = f'v[{GR}:{GR+15}]'
            e.I(f'v_mfma_f32_32x32x16_bf16 {acc}, v[{x}:{x+3}], v[{x}:{x+3}], {acc if s else "0"}')
    st(2)
    e.I('v_and_b32 v36, 1, v2');  e.I('v_cmp_eq_u32 s[62:63], 1, v36')
    e.I('v_and_b32 v36, 2, v2');  e.I('v_cmp_eq_u32 s[50:51], 2, v36')
    e.I('v_and_b32 v36, 8, v2');  e.I('v_cmp_eq_u32 s[48:49], 8, v36')
    e.I('v_and_b32 v36, 16, v2'); e.I('v_cmp_eq_u32 s[46:47], 16, v36')
    for k_ in range(8):
        e.I(f'v_cndmask_b32 v{GR+2*k_}, v{GR+2*k_}, v{GR+2*k_+1}, s[62:63]')
    for k_ in range(4):
        e.I(f'v_cndmask_b32 v{GR+4*k_}, v{GR+4*k_}, v{GR+4*k_+2}, s[50:51]')
    for k_ in range(2):
        e.I(f'v_cndmask_b32 v{GR+8*k_}, v{GR+8*k_}, v{GR+8*k_+4}, s[48:49]')
    e.I(f'v_cndmask_b32 v40, v{GR}, v{GR+8}, s[46:47]')
    e.I('v_bfe_u32 v36, v2, 2, 1')
    e.I('v_cmp_eq_u32 vcc, v36, v3')
    e.I('v_cndmask_b32 v40, 0, v40, vcc')
    e.I('v_mov_b32 v41, v40')
    e.I('v_permlane32_swap_b32 v40, v41')
    e.I('v_add_f32 v40, v40, v41')
    e.I(f'v_mov_b32 v36, v{AC+48+12}')
    inv = 0x3ae38e39
    e.I(f'v_mul_f32 v36, {inv:#x}, v36')
    e.I(f'v_mul_f32 v40, {inv:#x}, v40')
    e.I('v_fma_f32 v40, -v36, v36, v40')
    e.I('v_max_f32 v40, 0, v40')
    e.I('v_add_f32 v40, 0x3727c5ac, v40')
    e.I('v_rsq_f32 v44, v40')
    e.I('v_mul_f32 v45, v36, v44')
    e.I('v_sub_f32 v45, 0, v45')
    CSL = 40960
    e.I('s_barrier')
    e.I('s_lshl_b32 s45, s3, 7')
    e.I('v_lshl_add_u32 v46, v3, 4, s45')
    e.I('v_cmp_eq_u32 vcc, 0, v2')
    e.I('s_and_saveexec_b64 s[58:59], vcc')
    for a in range(4):
        e.L(f'ds_write_b128 v46, v[{CS+4*a}:{CS+4*a+3}] offset:{CSL + 32*a}', 'w')
    e.I('s_mov_b64 exec, -1')
    e.I('v_lshlrev_b32 v46, 4, v3')
    e.I('s_waitcnt lgkmcnt(0)')
    e.lg_done = len(e.lg)
    e.I('s_barrier')
    groups_all = [(T, a) for T in range(4) for a in range(4) if (T, a) != (3, 3)]
    for gi, (T, a) in enumerate(groups_all):
        e.L(f'ds_read_b128 v[{FB+4*gi}:{FB+4*gi+3}], v46 offset:{CSL + 128*T + 32*a}', ('c', gi))
    def R(T, a, c):
        return AC + 16 * T + 4 * a + c
    for gi, (T, a) in enumerate(groups_all):
        e.wait_lg(('c', gi))
        for c in range(4):
            e.I(f'v_mul_f32 v{FB+4*gi+c}, v45, v{FB+4*gi+c}')
        for c in range(4):
            e.I(f'v_fma_f32 v{R(T,a,c)}, v{R(T,a,c)}, v44, v{FB+4*gi+c}')
    st(3)
    rs = [R(T, a, c) for (T, a) in groups_all[:10] for c in range(4)]
    ts = [FB + i for i in range(40)]
    for r, t in zip(rs, ts):
        e.I(f'v_min_f32 v{t}, 0, v{r}')
    for r, t in zip(rs, ts):
        e.I(f'v_mul_f32 v{t}, {LOG2E:#x}, v{t}')
    for r, t in zip(rs, ts):
        e.I(f'v_exp_f32 v{t}, v{t}')
    for r, t in zip(rs, ts):
        e.I(f'v_max_f32 v{r}, 0x358637bd, v{r}') if False else e.I(f'v_max_f32 v{r}, 0, v{r}')
    for r, t in zip(rs, ts):
        e.I(f'v_add_f32 v{t}, 0x358637bd, v{t}')
    for r, t in zip(rs, ts):
        e.I(f'v_add_f32 v{r}, v{r}, v{t}')
    def P(T, a):
        return 184 + (T * 4 + a) * 2
    for (T, a) in groups_all:
        e.I(f'v_cvt_pk_bf16_f32 v{P(T,a)}, v{R(T,a,0)}, v{R(T,a,1)}')
        e.I(f'v_cvt_pk_bf16_f32 v{P(T,a)+1}, v{R(T,a,2)}, v{R(T,a,3)}')
    e.I('v_add_u32 v30, s33, v2')
    e.I(f'v_mul_u32_u24 v30, {KVP}, v30')
    def pos(col):
        return (col // 18) * 64 + (col % 18) * 2
    DUMMY = 60
    groups = [((1, 1), 0, 0), ((1, 2), 0, 2), ((1, 3), 0, 4), ((2, 0), 0, 6), ((2, 1), 0, 8),
              ((2, 2), 128, 0), ((2, 3), 128, 2), ((3, 0), 128, 4), ((3, 1), 128, 6), ((3, 2), 128, 8)]
    e.I('v_lshl_add_u32 v31, v3, 3, v30')
    k = 0
    for (T, a), part, ch0 in groups:
        for pr in range(2):
            x0 = part + pos(4 * ch0 + 2 * pr)
            x1 = part + pos(4 * (ch0 + 1) + 2 * pr) if ch0 < 8 else DUMMY
            d = x1 - x0
            if d == 8:
                e.L(f'ds_write_b32 v31, v{P(T,a)+pr} offset:{x0}', 'w')
            else:
                t = 47 + (k % 4); k += 1
                e.I(f'v_mov_b32 v{t}, {d}')
                e.I(f'v_mad_i32_i24 v{t}, v3, v{t}, v30')
                e.L(f'ds_write_b32 v{t}, v{P(T,a)+pr} offset:{x0}', 'w')
    e.I('v_lshl_add_u32 v51, v3, 6, v30')
    e.I('v_mov_b32 v52, 0x3f80')
    e.L('ds_write_b32 v51, v52 offset:164', 'w')
    e.I('s_mul_i32 s45, s25, 72')
    e.I('v_add_u32 v53, s32, v2')
    e.I(f'v_mul_u32_u24 v53, {PQ_PITCH}, v53')
    e.I('v_lshl_add_u32 v54, v3, 3, v53')
    e.I('v_add_u32 v55, s45, v54')
    e.I(f'v_mov_b32 v57, {OOB}')
    e.I('v_cmp_eq_u32 s[48:49], 0, v3')
    e.I('v_cndmask_b32 v56, v57, v55, s[48:49]')
    e.I('s_waitcnt lgkmcnt(0)')
    e.lg_done = len(e.lg)
    e.I('s_barrier')
    st(4)
    if stamps:
        st(5)
    e.I('s_cmp_ge_u32 s3, 2')
    e.I('s_cbranch_scc1 L_k1_stores')
    e.I('v_lshl_add_u32 v15, v3, 3, v13')
    e.I(f'v_mul_u32_u24 v15, {KVP}, v15')
    e.I('v_lshl_add_u32 v15, v14, 5, v15')
    e.I('v_lshl_add_u32 v15, v12, 3, v15')
    e.I('s_lshl_b32 s50, s3, 6')
    e.I('v_add_u32 v15, s50, v15')
    KA = 128
    for ks in range(8):
        r = 64 + 8 * ks
        e.L(f'ds_read_b64_tr_b16 v[{r}:{r+1}], v15 offset:{ks*16*KVP + 128}', ('k', ks))
        e.L(f'ds_read_b64_tr_b16 v[{r+2}:{r+3}], v15 offset:{ks*16*KVP + 128 + 4*KVP}', ('k', ks))
        e.L(f'ds_read_b64_tr_b16 v[{r+4}:{r+5}], v15 offset:{ks*16*KVP}', ('k', ks))
        e.L(f'ds_read_b64_tr_b16 v[{r+6}:{r+7}], v15 offset:{ks*16*KVP + 4*KVP}', ('k', ks))
        if ks >= 2:
            k2 = ks - 2
            e.wait_lg(('k', k2))
            r2 = 64 + 8 * k2
            e.I(f'v_mfma_f32_32x32x16_bf16 v[{KA}:{KA+15}], v[{r2}:{r2+3}], v[{r2+4}:{r2+7}], {"v[%d:%d]" % (KA, KA+15) if k2 else "0"}')
    e.I('s_lshl_b32 s50, s25, 1')
    e.I('s_add_u32 s50, s50, s3')
    e.I('s_mul_i32 s50, s50, %d' % KV_HEAD_BYTES)
    e.I('v_mul_u32_u24 v18, 384, v3')
    e.I('v_lshl_add_u32 v18, v2, 2, v18')
    e.I('v_cmp_gt_u32 vcc, 18, v2')
    e.I('v_cndmask_b32 v18, v57, v18, vcc')
    e.I('v_cndmask_b32 v19, v57, v18, s[48:49]')
    for k2 in (6, 7):
        e.wait_lg(('k', k2))
        r2 = 64 + 8 * k2
        e.I(f'v_mfma_f32_32x32x16_bf16 v[{KA}:{KA+15}], v[{r2}:{r2+3}], v[{r2+4}:{r2+7}], v[{KA}:{KA+15}]')
    e.I('s_waitcnt vmcnt(%d)' % (3 if prefetch else 0))
    e.label('L_k1_poll')
    e.I('v_readfirstlane_b32 s51, v59')
    e.I('s_cmp_lg_u32 s51, 0')
    e.I('s_cbranch_scc1 L_k1_go')
    e.I('s_sleep 2')
    e.I('buffer_load_dword v59, v58, s[40:43], s37 offen offset:64 sc0 sc1')
    e.I('s_waitcnt vmcnt(0)')
    e.I('s_branch L_k1_poll')
    e.label('L_k1_go')
    st(5)
    e.I('s_nop 7')
    e.I('s_nop 3')
    for a in range(2):
        for c in range(4):
            e.I(f'buffer_atomic_add_f32 v{KA+4*a+c}, v18, s[20:23], s50 offen offset:{(8*a+c)*96}')
    for c in range(3):
        e.I(f'buffer_atomic_add_f32 v{KA+8+c}, v19, s[20:23], s50 offen offset:{(16+c)*96}')
    e.label('L_k1_stores')
    for a in range(4):
        e.I(f'buffer_store_dwordx2 v[{P(0,a)}:{P(0,a)+1}], v55, s[16:19], 0 offen offset:{16*a}')
    e.I(f'buffer_store_dwordx2 v[{P(1,0)}:{P(1,0)+1}], v56, s[16:19], 0 offen offset:64')
    e.I('s_cmp_lg_u32 s25, 15')
    e.I('s_cbranch_scc1 L_k1_fin')
    e.I('v_mov_b32 v60, 0')
    e.I('v_mov_b32 v61, 0')
    e.I('buffer_store_dwordx2 v[60:61], v54, s[16:19], 0 offen offset:1152')
    e.label('L_k1_fin')
    st.dump()
    e.label('L_k1_done')
    e.I('s_endpgm')
    return e.finalize() + kd(name, 256, 256)

for g in range(192):
    assert (g * 2731) >> 16 == g // 24, g
for c in range(29):
    assert (c * 13) >> 7 == c // 10, c
```

```python
from asmlib import Em
from common import *

PQ_LDS = 64 * PQ_PITCH
WO_LDS = PQ_LDS
K2_LDS = PQ_LDS + 576 * 144 + 1024

def gen_k2(name='attn_kernel', stamps=False):
    e = Em()
    st = Stamps(e, stamps, 1)
    e.raw(head(name))
    e.I('s_cmp_ge_u32 s2, 256')
    e.I('s_cbranch_scc1 L_k2_done')
    st(0)
    e.I('s_load_dwordx2 s[4:5], s[0:1], 0')
    e.I('s_load_dwordx2 s[6:7], s[0:1], 16')
    e.I('s_load_dwordx2 s[30:31], s[0:1], 72')
    e.I('s_load_dwordx2 s[84:85], s[0:1], 48')
    e.I('v_lshrrev_b32 v1, 6, v0')
    e.I('v_readfirstlane_b32 s3, v1')
    e.I('v_and_b32 v1, 63, v0')
    e.I('s_and_b32 s24, s2, 7')
    e.I('s_lshl_b32 s24, s24, 2')
    e.I('s_lshr_b32 s25, s2, 3')
    e.I('s_and_b32 s26, s25, 3')
    e.I('s_add_u32 s24, s24, s26')
    e.I('s_lshr_b32 s25, s25, 2')
    e.I('v_and_b32 v2, 15, v1')
    e.I('v_lshrrev_b32 v3, 4, v1')
    e.I(f'v_mov_b32 v6, {OOB}')
    e.I('v_min_u32 v5, 2, v3')
    e.I('v_lshlrev_b32 v5, 5, v5')
    e.I('s_lshl_b32 s28, s3, 13')
    e.I(f's_add_u32 s28, s28, {WO_LDS}')
    e.I('v_add_u32 v5, s28, v5')
    e.I('v_mul_u32_u24 v4, 96, v2')
    e.I('v_add_u32 v4, v4, v5')
    e.I('v_cmp_gt_u32 s[60:61], 3, v3')
    e.I('v_and_b32 v8, 3, v2')
    e.I('v_cmp_eq_u32 s[44:45], 2, v8')
    e.I('v_and_b32 v7, 1, v2')
    e.I('v_cndmask_b32 v7, v7, 2, s[44:45]')
    e.I('v_mul_u32_u24 v7, 96, v7')
    e.I('v_add3_u32 v7, v7, v5, 0')
    e.I('v_add_u32 v7, 1536, v7')
    e.I('v_cmp_gt_u32 s[46:47], 2, v2')
    e.I('s_or_b64 s[44:45], s[44:45], s[46:47]')
    e.I('s_and_b64 s[62:63], s[44:45], s[60:61]')
    e.I('s_mul_i32 s27, s3, %d' % (4 * KV_HEAD_BYTES))
    e.I('v_lshlrev_b32 v8, 4, v1')
    e.I('v_lshlrev_b32 v9, 4, v0')
    e.I('s_mul_i32 s29, s24, %d' % PQ_LDS)
    e.I('s_lshl_b32 s33, s3, 10')
    e.I('v_mul_u32_u24 v10, 57, v1')
    e.I('v_lshrrev_b32 v10, 9, v10')
    e.I('v_mul_u32_u24 v11, 9, v10')
    e.I('v_sub_u32 v11, v1, v11')
    e.I('v_mul_u32_u24 v10, 1152, v10')
    e.I('v_lshl_add_u32 v10, v11, 4, v10')
    e.I('s_mul_i32 s34, s25, 144')
    e.I('s_mul_i32 s35, s3, %d' % (6 * 1152))
    e.I('s_add_u32 s35, s35, s34')
    e.I('v_add_u32 v10, s35, v10')
    e.I('s_mul_i32 s48, s3, 864')
    e.I('s_lshr_b32 s56, s2, 3')
    e.I('s_mul_i32 s57, s56, 73')
    e.I('s_and_b32 s58, s2, 7')
    e.I('s_mul_i32 s58, s58, 2336')
    e.I('s_add_u32 s57, s57, s58')
    e.I('v_add_u32 v24, s57, v0')
    e.I('v_lshlrev_b32 v24, 7, v24')
    e.I('v_cmp_gt_u32 vcc, 73, v0')
    e.I('v_cndmask_b32 v24, v6, v24, vcc')
    e.I('s_mul_i32 s57, s56, 15')
    e.I('v_subrev_u32 v25, 128, v0')
    e.I('v_cmp_gt_u32 vcc, 15, v25')
    e.I('v_add_u32 v25, s57, v25')
    e.I('v_lshlrev_b32 v25, 7, v25')
    e.I('v_cndmask_b32 v25, v6, v25, vcc')
    e.I('s_waitcnt lgkmcnt(0)')
    srd_off(e, 20, 30, 31, WS_KV, 32 * KV_HEAD_BYTES)
    srd_off(e, 16, 30, 31, WS_PQ, PQ_BYTES)
    e.V('buffer_load_dword v26, v24, s[16:19], 0 offen', 'pf')
    e.V('buffer_load_dword v27, v25, s[20:23], 0 offen', 'pf')
    KVR = 64
    e.I('s_mov_b32 m0, s28')
    for j in range(8):
        e.V(f'buffer_load_dwordx4 v8, s[20:23], s27 offen offset:{1024*(j%4)} lds', ('kv', j))
        if j == 3:
            e.I('s_add_u32 m0, m0, 0x1000')
            e.I('s_add_u32 s27, s27, 0x1000')
    e.I('s_mov_b32 m0, s33')
    for j in range(10):
        if j == 9:
            e.I('s_cmp_lg_u32 s3, 0')
            e.I('s_cbranch_scc1 L_k2_skip_pq')
        e.V('buffer_load_dwordx4 v9, s[16:19], s29 offen lds', ('pq', j) if j < 9 else 'pf')
        if j < 9:
            e.I('s_add_u32 m0, m0, 0x2000')
            e.I('s_add_u32 s29, s29, 0x2000')
    e.label('L_k2_skip_pq')
    e.wait_vm(('kv', 7))
    for hh in range(4):
        for tl, vo in ((0, 4), (1, 7)):
            r = KVR + (hh * 2 + tl) * 8
            e.L(f'ds_read_b128 v[{r}:{r+3}], v{vo} offset:{hh*KV_HEAD_BYTES}', ('kvr', hh))
            e.L(f'ds_read_b128 v[{r+4}:{r+7}], v{vo} offset:{hh*KV_HEAD_BYTES+16}', ('kvr', hh))
    e.I('s_waitcnt lgkmcnt(0)')
    e.lg_done = len(e.lg)
    e.I('s_barrier')
    srd(e, 12, 6, 7, 576 * 576 * 2)
    srd(e, 8, 4, 5, ACT_BYTES)
    e.I(f's_add_u32 m0, s48, {WO_LDS}')
    e.I('s_mov_b32 s49, 0')
    e.I('s_mov_b32 s50, -1')
    e.I('s_mov_b32 s51, 0x3fffff')
    e.I('s_mov_b64 exec, s[50:51]')
    for j in range(12):
        e.V('buffer_load_dwordx4 v10, s[12:15], s49 offen lds', ('wo', j))
        if j < 11:
            e.I('s_add_u32 m0, m0, 6912')
            e.I(f's_add_u32 s49, s49, {48*1152}')
    e.I('s_mov_b64 exec, -1')
    e.I('s_and_b32 s52, s3, 3')
    e.I('s_lshr_b32 s53, s3, 2')
    e.I('s_lshl_b32 s35, s24, 6')
    e.I('s_lshl_b32 s54, s52, 4')
    e.I('s_add_u32 s35, s35, s54')
    e.I('v_add_u32 v12, s35, v2')
    e.I('v_mul_u32_u24 v13, 1152, v12')
    e.I('v_lshl_add_u32 v13, v3, 3, v13')
    e.I('s_mul_i32 s55, s53, 96')
    e.I('s_add_u32 s56, s55, s34')
    e.I('v_add_u32 v13, s56, v13')
    XR = 40
    for j in range(3):
        e.V(f'buffer_load_dwordx2 v[{XR+2*j}:{XR+2*j+1}], v13, s[8:11], 0 offen offset:{32*j}', ('x', j))
    e.I('s_lshr_b32 s82, s2, 3')
    e.I('s_lshl_b32 s82, s82, 3')
    e.I('s_add_u32 s82, s82, s3')
    e.I('s_mul_i32 s82, s82, 21')
    e.I('s_and_b32 s83, s2, 7')
    e.I('s_mul_i32 s83, s83, 5184')
    e.I('v_min_u32 v46, 20, v1')
    e.I('v_add_u32 v46, s82, v46')
    e.I('v_min_u32 v46, 5183, v46')
    e.I('v_add_u32 v46, s83, v46')
    e.I('v_lshlrev_b32 v46, 7, v46')
    e.V('global_load_dword v47, v46, s[84:85]', ('pfl', 0))
    srd_off(e, 36, 30, 31, WS_H, ACT_BYTES)
    srd_off(e, 40, 30, 31, WS_STATS, STATS_BYTES)
    st(1)
    e.I(f'v_mul_u32_u24 v14, {PQ_PITCH}, v2')
    e.I('s_mul_i32 s57, s3, 144')
    e.I('v_add_u32 v14, s57, v14')
    e.I('v_lshl_add_u32 v15, v3, 3, v14')
    e.I('v_min_u32 v16, 2, v3')
    e.I('v_lshl_add_u32 v14, v16, 4, v14')
    e.I('v_cmp_eq_u32 s[58:59], 0, v3')
    KF = 128
    for f in range(8):
        r = KVR + f * 8
        for c in range(4):
            e.I(f'v_cvt_pk_bf16_f32 v{KF+4*f+c}, v{r+2*c}, v{r+2*c+1}')
        for c in range(4):
            e.I(f'v_cndmask_b32 v{KF+4*f+c}, 0, v{KF+4*f+c}, s[{60 if f % 2 == 0 else 62}:{61 if f % 2 == 0 else 63}]')
    st(2)
    e.I('s_waitcnt vmcnt(16)')
    e.I('s_barrier')
    st(3)
    PB = 64
    ACC = 160
    for mt in range(4):
        mo = mt * 16 * PQ_PITCH
        for hh in range(4):
            r = PB + (mt * 4 + hh) * 4
            o = 9 * hh
            if mo // 4 + o + 3 <= 255:
                e.L(f'ds_read2_b32 v[{r}:{r+1}], v14 offset0:{o} offset1:{o+1}', ('b', mt, hh))
                e.L(f'ds_read2_b32 v[{r+2}:{r+3}], v14 offset0:{o+2} offset1:{o+3}', ('b', mt, hh))
            else:
                if hh == 0:
                    e.I(f'v_add_u32 v{16+mt}, {mo}, v14')
                e.L(f'ds_read2_b32 v[{r}:{r+1}], v{16+mt} offset0:{o} offset1:{o+1}', ('b', mt, hh))
                e.L(f'ds_read2_b32 v[{r+2}:{r+3}], v{16+mt} offset0:{o+2} offset1:{o+3}', ('b', mt, hh))
    for half in range(2):
        for idx in range(8 * half, 8 * half + 8):
            mt, hh = idx // 4, idx % 4
            r = PB + idx * 4
            acc = ACC + (idx % 8) * 8
            e.wait_lg(('b', mt, hh))
            e.I(f'v_mfma_f32_16x16x32_bf16 v[{acc}:{acc+3}], v[{KF+8*hh}:{KF+8*hh+3}], v[{r}:{r+3}], 0')
            e.I(f'v_mfma_f32_16x16x32_bf16 v[{acc+4}:{acc+7}], v[{KF+8*hh+4}:{KF+8*hh+7}], v[{r}:{r+3}], 0')
        accs = [ACC + k * 8 for k in range(8)]
        for a in accs:
            e.I(f'v_add_f32 v{a+6}, 0x358637bd, v{a+6}')
        for a in accs:
            e.I(f'v_rcp_f32 v{a+6}, v{a+6}')
        for c in range(6):
            for a in accs:
                e.I(f'v_mul_f32 v{a+c}, v{a+c}, v{a+6}')
        for a in accs:
            e.I(f'v_cvt_pk_bf16_f32 v{a}, v{a}, v{a+1}')
            e.I(f'v_cvt_pk_bf16_f32 v{a+1}, v{a+2}, v{a+3}')
            e.I(f'v_cvt_pk_bf16_f32 v{a+2}, v{a+4}, v{a+5}')
        for mt in (2 * half, 2 * half + 1):
            if mt > 0:
                e.I(f'v_add_u32 v{20+mt}, {mt*16*PQ_PITCH}, v15')
        for k, a in enumerate(accs):
            mt, hh = 2 * half + k // 4, k % 4
            wb = 15 if mt == 0 else 20 + mt
            e.L(f'ds_write2_b32 v{wb}, v{a}, v{a+1} offset0:{9*hh} offset1:{9*hh+1}', 'w')
        e.I('s_mov_b64 exec, s[58:59]')
        for k, a in enumerate(accs):
            mt, hh = 2 * half + k // 4, k % 4
            wb = 15 if mt == 0 else 20 + mt
            e.L(f'ds_write_b32 v{wb}, v{a+2} offset:{4*(9*hh+8)}', 'w')
        e.I('s_mov_b64 exec, -1')
    st(4)
    e.I('s_mul_i32 s57, s52, %d' % (16 * PQ_PITCH))
    e.I(f'v_mul_u32_u24 v14, {PQ_PITCH}, v2')
    e.I('v_lshl_add_u32 v14, v3, 4, v14')
    e.I('v_add_u32 v14, s57, v14')
    e.I('v_and_b32 v18, 3, v1')
    e.I('v_bfe_u32 v19, v1, 2, 2')
    e.I('v_lshl_add_u32 v19, v3, 3, v19')
    e.I('v_mul_u32_u24 v19, 144, v19')
    e.I('v_lshl_add_u32 v19, v18, 3, v19')
    e.I(f's_add_u32 s57, s55, {WO_LDS}')
    e.I('v_add_u32 v19, s57, v19')
    e.I(f'v_add_u32 v18, {9*32*144}, v19')
    e.I('s_waitcnt vmcnt(4) lgkmcnt(0)')
    e.lg_done = len(e.lg)
    e.I('s_barrier')
    st(5)
    NB = 3
    def rd(s):
        bb = 64 + (s % NB) * 16
        e.L(f'ds_read_b128 v[{bb}:{bb+3}], v14 offset:{64*s}', ('g', s))
        base = 19 if s < 9 else 18
        so = (s % 9) * 32 * 144
        for T in range(3):
            r = bb + 4 + 4 * T
            e.L(f'ds_read_b64_tr_b16 v[{r}:{r+1}], v{base} offset:{so + 32*T}', ('g', s))
            e.L(f'ds_read_b64_tr_b16 v[{r+2}:{r+3}], v{base} offset:{so + 32*T + 4*144}', ('g', s))
    rd(0); rd(1)
    OA = 128
    for s in range(18):
        if s + 2 < 18:
            rd(s + 2)
        e.wait_lg(('g', s))
        bb = 64 + (s % NB) * 16
        for T in range(3):
            c = f'v[{OA+4*T}:{OA+3+4*T}]' if s > 0 else '0'
            e.I(f'v_mfma_f32_16x16x32_bf16 v[{OA+4*T}:{OA+3+4*T}], v[{bb+4+4*T}:{bb+7+4*T}], v[{bb}:{bb+3}], {c}')
    st(6)
    e.I('v_lshrrev_b32 v20, 5, v12')
    e.I('v_mul_u32_u24 v20, %d, v20' % (36 * 1024))
    e.I('v_and_b32 v21, 31, v12')
    e.I('v_lshl_add_u32 v20, v21, 4, v20')
    e.I('s_mul_i32 s57, s25, 72')
    e.I('s_mul_i32 s56, s53, 48')
    e.I('s_add_u32 s57, s57, s56')
    e.I('v_lshl_add_u32 v21, v3, 2, s57')
    e.I('v_lshrrev_b32 v22, 3, v21')
    e.I('v_lshl_add_u32 v20, v22, 9, v20')
    e.I('v_and_b32 v22, 7, v21')
    e.I('v_lshl_add_u32 v20, v22, 1, v20')
    e.I('v_lshl_add_u32 v23, v3, 2, s56')
    e.I('v_mov_b32 v30, 0')
    e.I('v_mov_b32 v31, 0')
    e.I('v_mov_b32 v28, 0x3f803f80')
    e.I('s_waitcnt vmcnt(1)')
    for T in range(3):
        a = OA + 4 * T
        x = XR + 2 * T
        e.I(f'v_lshlrev_b32 v24, 16, v{x}')
        e.I(f'v_and_b32 v25, 0xffff0000, v{x}')
        e.I(f'v_lshlrev_b32 v26, 16, v{x+1}')
        e.I(f'v_and_b32 v27, 0xffff0000, v{x+1}')
        e.I(f'v_cmp_gt_u32 vcc, {72 - 16*T}, v23')
        for c in range(4):
            e.I(f'v_add_f32 v{a+c}, v{a+c}, v{24+c}')
        e.I(f'v_cvt_pk_bf16_f32 v{a}, v{a}, v{a+1}')
        e.I(f'v_cvt_pk_bf16_f32 v{a+1}, v{a+2}, v{a+3}')
        e.I(f'v_cndmask_b32 v{32+T}, v6, v20, vcc')
        e.V(f'buffer_store_dwordx2 v[{a}:{a+1}], v{32+T}, s[36:39], 0 offen offset:{1024*T}', ('st', T))
        e.I(f'v_cndmask_b32 v{a+2}, 0, v{a}, vcc')
        e.I(f'v_cndmask_b32 v{a+3}, 0, v{a+1}, vcc')
        e.I(f'v_dot2_f32_bf16 v30, v{a+2}, v28, v30')
        e.I(f'v_dot2_f32_bf16 v31, v{a+2}, v{a+2}, v31')
        e.I(f'v_dot2_f32_bf16 v30, v{a+3}, v28, v30')
        e.I(f'v_dot2_f32_bf16 v31, v{a+3}, v{a+3}, v31')
    for sw in ('v_permlane16_swap_b32', 'v_permlane32_swap_b32'):
        e.I('v_mov_b32 v36, v30')
        e.I('v_mov_b32 v37, v31')
        e.I(f'{sw} v30, v36')
        e.I(f'{sw} v31, v37')
        e.I('v_add_f32 v30, v30, v36')
        e.I('v_add_f32 v31, v31, v37')
    e.I('v_lshrrev_b32 v38, 5, v12')
    e.I('v_lshlrev_b32 v38, 12, v38')
    e.I('v_and_b32 v39, 31, v12')
    e.I('v_lshl_add_u32 v38, v39, 4, v38')
    e.I('s_and_b32 s54, s25, 3')
    e.I('s_lshl_b32 s54, s54, 10')
    e.I('s_lshr_b32 s56, s25, 2')
    e.I('s_lshl_b32 s56, s56, 9')
    e.I('s_add_u32 s54, s54, s56')
    e.I('s_lshl_b32 s56, s53, 3')
    e.I('s_add_u32 s54, s54, s56')
    e.I('v_add_u32 v38, s54, v38')
    e.I('v_cndmask_b32 v38, v6, v38, s[58:59]')
    e.V('buffer_store_dwordx2 v[30:31], v38, s[40:43], 0 offen', ('st', 9))
    st.dump()
    e.label('L_k2_done')
    e.I('s_endpgm')
    return e.finalize() + kd(name, 224, 224)

for l in range(64):
    assert (l * 57) >> 9 == l // 9
```

```python
from asmlib import Em
from common import *

SLOT = 18496
NSLOT = 8
UP_OFF = 9248
K3_LDS = SLOT * NSLOT
D = 6
NF = 8
AHEAD = 6
XB = 32
HB = 176
FB = 208

def gu_block(t):
    return ('v', HB + 16 * t) if t < 5 else ('a', 16 * (t - 5))

def rng(k, b, n):
    return f'{k}[{b}:{b+n-1}]'

class Task:
    def __init__(self, ops, ready, deadline, kind='I'):
        self.ops = list(ops); self.ready = ready; self.deadline = deadline

def gen_k3(name='ffn_kernel', budgetA=2, budgetB=6, stamps=False, nodma=False, nobar=False, nonorm=False, D=6, AHEAD=6, dma_gap=1, pstamps=False, order=0, nowait=False, dmapre=False, samesrc=False):
    e = Em()
    def stamp(k):
        if stamps:
            e.I(f's_memtime s[{60+2*k}:{61+2*k}]')
    e.raw(head(name))
    e.I('s_cmp_ge_u32 s2, 256')
    e.I('s_cbranch_scc1 L_k3_done')
    stamp(0)
    if stamps:
        e.I('s_memrealtime s[80:81]')
    e.I('s_load_dwordx4 s[4:7], s[0:1], 32')
    e.I('s_load_dwordx2 s[28:29], s[0:1], 48')
    e.I('s_load_dwordx2 s[30:31], s[0:1], 72')
    e.I('v_lshrrev_b32 v1, 6, v0')
    e.I('v_readfirstlane_b32 s3, v1')
    e.I('v_and_b32 v1, 63, v0')
    e.I('s_and_b32 s24, s2, 7')
    e.I('s_lshl_b32 s24, s24, 1')
    e.I('s_lshr_b32 s25, s2, 3')
    e.I('s_and_b32 s25, s25, 1')
    e.I('s_add_u32 s24, s24, s25')
    e.I('s_lshr_b32 s25, s2, 4')
    e.I('s_mov_b32 s34, -1')
    e.I('s_mov_b32 s35, 0')
    e.I('s_and_b32 s36, s3, 1')
    e.I('s_lshr_b32 s37, s3, 1')
    e.I('s_mul_i32 s26, s37, %d' % UP_OFF)
    e.I('s_mul_i32 s38, s36, 4608')
    e.I('s_add_u32 s26, s26, s38')
    e.I('s_mul_i32 s27, s3, 4608')
    e.I('s_mul_i32 s38, s36, %d' % (8 * 9216))
    e.I('s_mul_i32 s39, s24, 576')
    e.I('s_add_u32 s38, s38, s39')
    e.I('s_mul_i32 s39, s3, %d' % (8 * 1152))
    e.I('s_mul_i32 s40, s24, %d' % (288 * 1152))
    e.I('s_add_u32 s39, s39, s40')
    e.I('s_mov_b32 s41, 9216')
    e.I('s_mov_b32 s42, 1152')
    for j in range(5):
        e.I(f'v_add_u32 v24, {64*j}, v1')
        e.I('v_mul_u32_u24 v25, 1821, v24')
        e.I('v_lshrrev_b32 v25, 16, v25')
        e.I('v_mul_u32_u24 v26, 36, v25')
        e.I('v_sub_u32 v26, v24, v26')
        e.I('v_lshlrev_b32 v26, 4, v26')
        jo = 1024 * min(j, 3)
        e.I(f'v_mad_u32_u24 v{2+j}, v25, s41, v26')
        e.I(f'v_add_u32 v{2+j}, s38, v{2+j}')
        e.I(f'v_mad_u32_u24 v{7+j}, v25, s42, v26')
        e.I(f'v_add_u32 v{7+j}, s39, v{7+j}')
        if jo:
            e.I(f'v_subrev_u32 v{2+j}, {jo}, v{2+j}')
            e.I(f'v_subrev_u32 v{7+j}, {jo}, v{7+j}')
    e.I('s_lshl_b32 s43, s25, 2')
    e.I('s_add_u32 s43, s43, s3')
    e.I('s_mul_i32 s43, s43, %d' % (36 * 1024))
    e.I('v_lshlrev_b32 v23, 4, v1')
    e.I('v_add_u32 v23, s43, v23')
    e.I('s_waitcnt lgkmcnt(0)')
    if pstamps: stamp(3)
    e.I('s_cmp_eq_u32 s37, 0')
    e.I('s_cselect_b32 s8, s4, s6')
    e.I('s_cselect_b32 s9, s5, s7')
    e.I('s_and_b32 s9, s9, 0xffff')
    e.I('s_mov_b32 s10, %d' % (576 * 4608 * 2))
    e.I('s_mov_b32 s11, 0x00020000')
    srd(e, 12, 28, 29, 4608 * 576 * 2)
    srd_off(e, 16, 30, 31, WS_H, ACT_BYTES)
    e.I('s_mul_i32 s45, s24, %d' % ACT_BYTES)
    e.I('s_add_u32 s45, s45, %d' % WS_P)
    srd_off(e, 20, 30, 31, 's45', ACT_BYTES)

    NU = 54
    def dma_ops(u):
        slot = (u % NSLOT) * SLOT
        ops = []
        if u < 36:
            so, wofs, vb, sr = u * 16 * 9216, 's26', 2, 8
        else:
            uu = u - 36
            hf, kb = uu // 9, uu % 9
            so, wofs, vb, sr = kb * 32 * 1152 + hf * 576, 's27', 7, 12
        ops.append(('I', f's_mov_b32 s32, {0 if samesrc else so}'))
        ops.append(('I', f's_add_u32 m0, {wofs}, {slot}'))
        for j in range(4):
            ops.append(('V', f'buffer_load_dwordx4 v{vb+j}, s[{sr}:{sr+3}], s32 offen offset:{1024*j} lds', ('dma', u)))
        ops.append(('I', f's_add_u32 m0, {wofs}, {slot + 1024}'))
        ops.append(('X', f'buffer_load_dwordx4 v{vb+4}, s[{sr}:{sr+3}], s32 offen offset:3072 lds', ('dma', u)))
        return ops

    def emit_op(op):
        if op[0] == 'I':
            e.I(op[1])
        elif op[0] == 'V':
            e.V(op[1], op[2])
        elif op[0] == 'X':
            e.I('s_mov_b64 exec, s[34:35]')
            e.V(op[1], op[2])
            e.I('s_mov_b64 exec, -1')

    for op in dma_ops(0):
        emit_op(op)
    if pstamps: stamp(4)
    for s in range(36):
        if s % 4 == 0:
            e.I(f's_mov_b32 s47, {s*1024}')
        e.V(f'buffer_load_dwordx4 v[{XB+4*s}:{XB+4*s+3}], v23, s[16:19], s47 offen offset:{1024*(s%4)}', ('x', s))
    if pstamps: stamp(5)
    if pstamps:
        e.wait_vm(('x', 0))
        stamp(6)
        e.wait_vm(('x', 35))
        stamp(7)
    for u in range(1, AHEAD):
        for op in dma_ops(u):
            emit_op(op)
    e.I('v_and_b32 v24, 3, v1')
    e.I('v_bfe_u32 v25, v1, 2, 2')
    e.I('v_bfe_u32 v26, v1, 4, 1')
    e.I('v_lshrrev_b32 v27, 5, v1')
    e.I('v_lshlrev_b32 v28, 3, v27')
    e.I('v_add_u32 v28, v28, v25')
    e.I('v_mul_u32_u24 v28, 576, v28')
    e.I('v_lshrrev_b32 v29, 1, v24')
    e.I(f'v_mul_u32_u24 v30, {UP_OFF}, v29')
    e.I('v_add_u32 v28, v28, v30')
    e.I('v_lshlrev_b32 v30, 4, v26')
    e.I('v_add_u32 v28, v28, v30')
    e.I('v_and_b32 v31, 1, v24')
    e.I('v_lshlrev_b32 v30, 3, v31')
    e.I('v_add_u32 v12, v28, v30')
    e.I('v_lshlrev_b32 v28, 2, v27')
    e.I('v_add_u32 v28, v28, v25')
    e.I('v_mul_u32_u24 v28, 576, v28')
    e.I('v_lshlrev_b32 v30, 5, v26')
    e.I('v_add_u32 v28, v28, v30')
    e.I('v_lshlrev_b32 v30, 4, v31')
    e.I('v_add_u32 v28, v28, v30')
    e.I('v_lshlrev_b32 v30, 3, v29')
    e.I('v_add_u32 v16, v28, v30')
    for p in range(1, 4):
        e.I(f'v_add_u32 v{12+p}, {2*SLOT*p}, v12')
        e.I(f'v_add_u32 v{16+p}, {2*SLOT*p}, v16')
    e.I('s_lshl_b32 s46, s25, 2')
    e.I('s_add_u32 s46, s46, s3')
    e.I('s_mul_i32 s46, s46, %d' % (36 * 1024))
    e.I('v_lshlrev_b32 v20, 4, v1')
    e.I('v_add_u32 v20, s46, v20')

    stamp(1)
    ln_stats(e, XB, HB, 21, 22, [('x', s) for s in range(36)])
    for s in range(2):
        for op in ln_norm_ops(XB, s, 24, 25, 21, 22):
            e.I(op)

    mf = []
    for u in range(36):
        for t in range(18):
            mf.append(dict(u=u, ph='A', s=u, t=t))
    for uu in range(18):
        hf, kb = uu // 9, uu % 9
        for ks in range(2):
            for t in range(9):
                mf.append(dict(u=36 + uu, ph='B', hf=hf, s=2 * kb + ks, ks=ks, t=t))
    NM = len(mf)
    first_of_unit = {}
    for i, m in enumerate(mf):
        first_of_unit.setdefault(m['u'], i)

    def frag_reads(i):
        m = mf[i]
        f = FB + 4 * (i % NF)
        sl = m['u'] % NSLOT
        so = (sl % 2) * SLOT
        if m['ph'] == 'A':
            base = 12 + sl // 2
            o0 = so + 32 * m['t']; o1 = o0 + 4 * 576
        else:
            base = 16 + sl // 2
            o0 = so + 16 * m['ks'] * 576 + 64 * m['t']; o1 = o0 + 8 * 576
        e.L(f'ds_read_b64_tr_b16 a[{f}:{f+1}], v{base} offset:{o0}', ('f', i))
        e.L(f'ds_read_b64_tr_b16 a[{f+2}:{f+3}], v{base} offset:{o1}', ('f', i))

    tasks = []
    for s in range(2, 36 if not nonorm else 2):
        tasks.append(Task([('I', o) for o in ln_norm_ops(XB, s, 24, 25, 21, 22)], 0, first_of_unit[s]))
    def glu_ops(t):
        k, b = gu_block(t)
        ops = []
        hh = HB + 4 * t
        for hq in range(2):
            g = [b + 8 * hq + c for c in range(4)]
            u = [b + 8 * hq + 4 + c for c in range(4)]
            T = [24, 25, 26, 27]
            U = [28, 29, 30, 31]
            if k == 'a':
                for c in range(4):
                    ops.append(f'v_accvgpr_read_b32 v{T[c]}, a{g[c]}')
                for c in range(4):
                    ops.append(f'v_accvgpr_read_b32 v{U[c]}, a{u[c]}')
                gs = [f'v{x}' for x in T]; us = [f'v{x}' for x in U]
            else:
                gs = [f'v{x}' for x in g]; us = [f'v{x}' for x in u]
            for c in range(4):
                ops.append(f'v_mul_f32 v{T[c]}, {NLOG2E:#x}, {gs[c]}')
            for c in range(4):
                ops.append(f'v_exp_f32 v{T[c]}, v{T[c]}')
            for c in range(4):
                ops.append(f'v_add_f32 v{T[c]}, 1.0, v{T[c]}')
            for c in range(4):
                ops.append(f'v_rcp_f32 v{T[c]}, v{T[c]}')
            for c in range(4):
                ops.append(f'v_mul_f32 v{T[c]}, v{T[c]}, {us[c]}')
            ops.append(f'v_cvt_pk_bf16_f32 v{hh+2*hq}, v{T[0]}, v{T[1]}')
            ops.append(f'v_cvt_pk_bf16_f32 v{hh+2*hq+1}, v{T[2]}, v{T[3]}')
        return ops
    firstB = first_of_unit[36]
    for t in range(18):
        tasks.append(Task([('I', o) for o in glu_ops(t)], 35 * 18 + t + 4, firstB + 9 * t))
    def store_ops(kind, b, half, t, tmp=None):
        ops = []
        for q in range(2):
            r = b + 8 * q
            if kind == 'a':
                for c in range(8):
                    ops.append(('I', f'v_accvgpr_read_b32 v{tmp+8*q+c}, a{r+c}'))
                r = tmp + 8 * q
            for c in range(4):
                ops.append(('I', f'v_cvt_pk_bf16_f32 v{r+c}, v{r+2*c}, v{r+2*c+1}'))
            ops.append(('I', f's_mov_b32 s33, {((half*9+t)*2+q)*1024}'))
            ops.append(('V', f'buffer_store_dwordx4 v[{r}:{r+3}], v20, s[20:23], s33 offen', ('st', half, t, q)))
        return ops
    firstH1 = first_of_unit[45]
    for t in range(9):
        tasks.append(Task(store_ops('v', XB + 16 * t, 0, t), firstH1 - 9 + t + 4, NM - 20 + t))

    dma_q = []

    def run_fillers(i, budget):
        for tk in tasks:
            if tk.ops and tk.deadline <= i:
                while tk.ops:
                    emit_op(tk.ops.pop(0))
        n = 0
        while dma_q and n < 1 and i % dma_gap == 0:
            op = dma_q.pop(0)
            emit_op(op)
            if op[0] in 'VX':
                n += 1
        cand = sorted([tk for tk in tasks if tk.ops and tk.ready <= i], key=lambda tk: tk.deadline)
        for tk in cand:
            while tk.ops and budget > 0:
                emit_op(tk.ops.pop(0)); budget -= 1
            if budget <= 0:
                break

    def barrier_for(u):
        if not (nowait and u > 0):
            e.wait_vm(('dma', u))
        if not nobar:
            e.I('s_barrier')
        if u + AHEAD < NU and not nodma:
            dma_q.extend(dma_ops(u + AHEAD))

    stamp(2)
    barrier_for(0)
    for i in range(D):
        frag_reads(i)
    for i in range(NM):
        m = mf[i]
        j = i + D
        if i in (18, 18*18, firstB, firstH1) and not pstamps:
            stamp({18:3, 18*18:4, firstB:5, firstH1:6}[i])
        if j < NM:
            if first_of_unit[mf[j]['u']] == j:
                while dma_q:
                    emit_op(dma_q.pop(0))
                barrier_for(mf[j]['u'])
            frag_reads(j)
        run_fillers(i, budgetA if i < 35 * 18 else budgetB)
        e.wait_lg(('f', i))
        f = FB + 4 * (i % NF)
        if m['ph'] == 'A':
            k, b = gu_block(m['t'])
            acc = rng(k, b, 16)
            c = acc if m['s'] > 0 else '0'
            e.I(f'v_mfma_f32_32x32x16_bf16 {acc}, a[{f}:{f+3}], v[{XB+4*m["s"]}:{XB+4*m["s"]+3}], {c}')
        else:
            acc = rng('v', XB + 16 * m['t'], 16) if m['hf'] == 0 else rng('a', 16 * m['t'], 16)
            c = acc if m['s'] > 0 else '0'
            hh = HB + 4 * m['s']
            e.I(f'v_mfma_f32_32x32x16_bf16 {acc}, a[{f}:{f+3}], v[{hh}:{hh+3}], {c}')
    for tk in tasks:
        while tk.ops:
            emit_op(tk.ops.pop(0))
    if not pstamps: stamp(7)
    for t in range(9):
        for op in store_ops('a', 16 * t, 1, t, tmp=XB + 16 * t):
            emit_op(op)
    if stamps:
        e.I('s_waitcnt vmcnt(0)')
        stamp(8)
        e.I('s_waitcnt lgkmcnt(0)')
        e.I('s_load_dwordx2 s[90:91], s[0:1], 72')
        e.I('s_waitcnt lgkmcnt(0)')
        srd_off(e, 92, 90, 91, 200 << 20, 1 << 20)
        e.I('s_lshl_b32 s96, s2, 2')
        e.I('s_add_u32 s96, s96, s3')
        e.I('s_lshl_b32 s96, s96, 6')
        e.I('v_mov_b32 v1, 0')
        e.I('s_memrealtime s[78:79]')
        e.I('s_waitcnt lgkmcnt(0)')
        e.I('s_sub_u32 s78, s78, s80')
        e.I('s_add_u32 s78, s78, s60')
        for k in range(10):
            e.I(f's_sub_u32 s97, s{60+2*k}, s60')
            e.I('v_mov_b32 v2, s97')
            e.I(f'buffer_store_dword v2, v1, s[92:95], s96 offen offset:{4*k}')
    e.label('L_k3_done')
    e.I('s_endpgm')
    return e.finalize() + kd(name, 512, 256)


def gen_k4(name='red_kernel', scale=0xbf317218):
    e = Em()
    e.raw(head(name))
    e.I('s_cmp_ge_u32 s2, 256')
    e.I('s_cbranch_scc1 L_k4_done')
    e.I('s_load_dwordx2 s[4:5], s[0:1], 56')
    e.I('s_load_dwordx2 s[6:7], s[0:1], 72')
    e.I('v_lshrrev_b32 v1, 6, v0')
    e.I('v_readfirstlane_b32 s3, v1')
    e.I('v_and_b32 v1, 63, v0')
    e.I('s_mul_i32 s20, s2, 9')
    e.I('s_add_u32 s20, s20, s3')
    e.I('s_mul_i32 s21, s20, 1821')
    e.I('s_lshr_b32 s21, s21, 16')
    e.I('s_mul_i32 s22, s21, 36')
    e.I('s_sub_u32 s22, s20, s22')
    e.I('s_lshl_b32 s23, s20, 10')
    e.I('v_lshlrev_b32 v2, 4, v1')
    e.I('v_add_u32 v2, s23, v2')
    e.I('s_lshl_b32 s24, s21, 5')
    e.I('v_and_b32 v3, 31, v1')
    e.I('v_add_u32 v3, s24, v3')
    e.I('v_mul_u32_u24 v3, 1152, v3')
    e.I('v_lshrrev_b32 v4, 5, v1')
    e.I('v_lshlrev_b32 v4, 4, v4')
    e.I('v_add_u32 v3, v3, v4')
    e.I('s_lshl_b32 s25, s22, 5')
    e.I('v_add_u32 v3, s25, v3')
    e.I('s_waitcnt lgkmcnt(0)')
    srd(e, 8, 4, 5, ACT_BYTES)
    srd_off(e, 12, 6, 7, WS_H, ACT_BYTES)
    srd_off(e, 16, 6, 7, WS_P, 16 * ACT_BYTES)
    e.V('buffer_load_dwordx4 v[8:11], v2, s[12:15], 0 offen', 'h')
    for j in range(16):
        e.I(f's_mov_b32 s26, {j*ACT_BYTES}')
        e.V(f'buffer_load_dwordx4 v[{12+4*j}:{15+4*j}], v2, s[16:19], s26 offen', ('p', j))
    for j in range(16):
        e.wait_vm(('p', j))
        for c in range(4):
            r = 12 + 4 * j + c
            if j == 0:
                e.I(f'v_lshlrev_b32 v{80+2*c}, 16, v{r}')
                e.I(f'v_and_b32 v{81+2*c}, 0xffff0000, v{r}')
            else:
                e.I(f'v_lshlrev_b32 v88, 16, v{r}')
                e.I(f'v_and_b32 v89, 0xffff0000, v{r}')
                e.I(f'v_add_f32 v{80+2*c}, v{80+2*c}, v88')
                e.I(f'v_add_f32 v{81+2*c}, v{81+2*c}, v89')
    e.I(f'v_mov_b32 v94, {scale:#x}')
    for c in range(4):
        e.I(f'v_lshlrev_b32 v88, 16, v{8+c}')
        e.I(f'v_and_b32 v89, 0xffff0000, v{8+c}')
        e.I(f'v_fma_f32 v{80+2*c}, v{80+2*c}, v94, v88')
        e.I(f'v_fma_f32 v{81+2*c}, v{81+2*c}, v94, v89')
    for c in range(4):
        e.I(f'v_cvt_pk_bf16_f32 v{90+c}, v{80+2*c}, v{81+2*c}')
    e.V('buffer_store_dwordx4 v[90:93], v3, s[8:11], 0 offen', 'st')
    e.label('L_k4_done')
    e.I('s_endpgm')
    return e.finalize() + kd(name, 96, 96)

if __name__ == '__main__':
    for q in range(320):
        assert (q * 1821) >> 16 == q // 36
    for q in range(2304):
        assert (q * 1821) >> 16 == q // 36, q
    hdr = f"""; @launch kernel=ffn_kernel grid=(256,1,1) block=(256,1,1) lds={K3_LDS}
; @launch kernel=red_kernel grid=(576,1,1) block=(256,1,1) lds=0
.amdgcn_target "amdgcn-amd-amdhsa--gfx950"
.text
"""
    import sys
    variants = {
        'k34': dict(),
        'k34_p': dict(pstamps=True),
        'k34_nodma': dict(nodma=True),
        'k34_nodma_nobar': dict(nodma=True, nobar=True),
        'k34_nonorm': dict(nonorm=True),
        'k34_gap3': dict(dma_gap=3),
        'k34_d4': dict(D=4),
    }
    for nm, kw in variants.items():
        open(f'dev/{nm}.s', 'w').write(hdr + gen_k3(stamps=True, **kw) + gen_k4())
```

```python
from asmlib import Em, Ins
from common import *

SLOT = 18496
NSLOT = 8
UP_OFF = 9248
K3_LDS = SLOT * NSLOT
NF = 8
XR = 32
XN = 48
GB = 64
FB = 224

def gu_block(t):
    return ('v', GB + 16 * t) if t < 12 else ('a', 16 * (t - 12))
def out0_block(t):
    return ('a', 96 + 16 * t) if t < 8 else ('v', XR)
def out1_block(t):
    if t < 7:
        return ('v', GB + 16 * (5 + t))
    return ('v', XN) if t == 7 else ('a', 0)
def rng(kb, n=16):
    return f'{kb[0]}[{kb[1]}:{kb[1]+n-1}]'

class Task:
    def __init__(self, ops, ready, deadline):
        self.ops = list(ops); self.ready = ready; self.deadline = deadline

def gen_k3(name='ffn_kernel', D=6, budgetA=2, budgetB=4, stamps=False, loop=True, TAILK=4, LSTART=5, LITER=6):
    e = Em()
    st = Stamps(e, stamps, 2)
    e.raw(head(name))
    e.I('s_cmp_ge_u32 s2, 256')
    e.I('s_cbranch_scc1 L_k3_done')
    st(0)
    e.I('s_load_dwordx4 s[4:7], s[0:1], 32')
    e.I('s_load_dwordx2 s[28:29], s[0:1], 48')
    e.I('s_load_dwordx2 s[30:31], s[0:1], 72')
    e.I('v_lshrrev_b32 v1, 6, v0')
    e.I('v_readfirstlane_b32 s3, v1')
    e.I('v_and_b32 v1, 63, v0')
    e.I('s_and_b32 s24, s2, 7')
    e.I('s_lshl_b32 s24, s24, 1')
    e.I('s_bfe_u32 s25, s2, 0x10003')
    e.I('s_add_u32 s24, s24, s25')
    e.I('s_lshr_b32 s25, s2, 4')
    e.I('s_mov_b32 s34, -1')
    e.I('s_mov_b32 s35, 0')
    e.I('s_and_b32 s36, s3, 1')
    e.I('s_lshr_b32 s37, s3, 1')
    e.I('s_mul_i32 s26, s37, %d' % UP_OFF)
    e.I('s_mul_i32 s38, s36, 4608')
    e.I('s_add_u32 s26, s26, s38')
    e.I('s_mul_i32 s27, s3, 4608')
    e.I('s_mul_i32 s38, s36, %d' % (8 * 9216))
    e.I('s_mul_i32 s39, s24, 576')
    e.I('s_add_u32 s38, s38, s39')
    e.I('s_mul_i32 s39, s3, %d' % (8 * 1152))
    e.I('s_mul_i32 s40, s24, %d' % (288 * 1152))
    e.I('s_add_u32 s39, s39, s40')
    e.I('s_movk_i32 s41, 9216')
    e.I('s_movk_i32 s42, 1152')
    e.I('s_lshl_b32 s43, s25, 2')
    e.I('s_add_u32 s43, s43, s3')
    e.I('s_mul_i32 s44, s43, %d' % (36 * 1024))
    e.I('v_lshlrev_b32 v18, 4, v1')
    e.I('v_add_u32 v18, s44, v18')
    e.I('s_lshl_b32 s45, s43, 12')
    e.I('v_lshl_add_u32 v22, v1, 4, s45')
    for j in range(5):
        e.I(f'v_add_u32 v24, {64*j}, v1')
        e.I('v_mul_u32_u24 v25, 1821, v24')
        e.I('v_lshrrev_b32 v25, 16, v25')
        e.I('v_mul_u32_u24 v26, 36, v25')
        e.I('v_sub_u32 v26, v24, v26')
        e.I('v_lshlrev_b32 v26, 4, v26')
        jo = 1024 * min(j, 3)
        if jo:
            e.I(f'v_subrev_u32 v26, {jo}, v26')
        e.I(f'v_mad_u32_u24 v{2+j}, v25, s41, v26')
        e.I(f'v_add_u32 v{2+j}, s38, v{2+j}')
        e.I(f'v_mad_u32_u24 v{7+j}, v25, s42, v26')
        e.I(f'v_add_u32 v{7+j}, s39, v{7+j}')
    e.I('s_waitcnt lgkmcnt(0)')
    e.I('s_cmp_eq_u32 s37, 0')
    e.I('s_cselect_b32 s8, s4, s6')
    e.I('s_cselect_b32 s9, s5, s7')
    e.I('s_and_b32 s9, s9, 0xffff')
    e.I('s_mov_b32 s10, %d' % (576 * 4608 * 2))
    e.I('s_mov_b32 s11, 0x00020000')
    srd_off(e, 48, 30, 31, WS_STATS, STATS_BYTES)
    srd_off(e, 16, 30, 31, WS_H, ACT_BYTES)
    for j in range(4):
        e.V(f'buffer_load_dwordx4 v[{GB+4*j}:{GB+4*j+3}], v22, s[48:51], 0 offen offset:{1024*j}', 'stat')
    e.I('s_mov_b32 s32, 0')
    e.I('s_mov_b32 s47, 0')
    e.I('s_mov_b32 s52, s26')
    e.I('s_lshl_b32 s53, s26, 1')
    e.I(f's_add_u32 s53, s53, {4*SLOT}')
    e.I(f's_mov_b32 s54, {4*SLOT}')
    e.I('s_mov_b32 s46, 0xffff0000')

    NU = 54
    def dma_ops(u):
        ops = []
        p = u % 4
        if u < 36:
            if p == 0 and u > 0:
                ops.append(('I', 's_sub_u32 s52, s53, s52'))
            ops.append(('I', f's_add_u32 m0, s52, {p*SLOT}'))
            vb, sr = 2, 8
        else:
            uu = u - 36
            hf, kb = uu // 9, uu % 9
            ops.append(('I', f's_mov_b32 s32, {kb*32*1152 + hf*576}'))
            ops.append(('I', f's_add_u32 m0, s27, {(u%8)*SLOT}'))
            vb, sr = 7, 12
        for j in range(4):
            ops.append(('V', f'buffer_load_dwordx4 v{vb+j}, s[{sr}:{sr+3}], s32 offen offset:{1024*j} lds', ('dma', u)))
        ops.append(('I', 's_add_u32 m0, m0, 0x400'))
        ops.append(('X', f'buffer_load_dwordx4 v{vb+4}, s[{sr}:{sr+3}], s32 offen offset:3072 lds', ('dma', u)))
        if u < 36:
            ops.append(('I', f's_add_u32 s32, s32, {16*9216}'))
        return ops
    def xload_ops(s):
        r = XR + 4 * (s % 4)
        return [('V', f'buffer_load_dwordx4 v[{r}:{r+3}], v18, s[16:19], s47 offen', ('x', s)),
                ('I', 's_add_u32 s47, s47, 0x400')]
    def emit_op(op):
        if op[0] == 'I':
            e.I(op[1])
        elif op[0] == 'V':
            e.V(op[1], op[2])
        elif op[0] == 'W':
            e.wait_vm(op[1])
        elif op[0] == 'X':
            e.I('s_mov_b64 exec, s[34:35]')
            e.V(op[1], op[2])
            e.I('s_mov_b64 exec, -1')
    def norm_ops(s):
        ops = [('W', ('x', s))]
        for j in range(4):
            r = XR + 4 * (s % 4) + j
            d = XN + 4 * (s % 4) + j
            a, b = (24, 25) if j % 2 == 0 else (26, 27)
            ops.append(('I', f'v_lshlrev_b32 v{a}, 16, v{r}'))
            ops.append(('I', f'v_and_b32 v{b}, s46, v{r}'))
            ops.append(('I', f'v_fma_f32 v{a}, v{a}, v20, v21'))
            ops.append(('I', f'v_fma_f32 v{b}, v{b}, v20, v21'))
            ops.append(('I', f'v_cvt_pk_bf16_f32 v{d}, v{a}, v{b}'))
        return ops

    for u in range(6):
        if u < 4:
            for op in xload_ops(u):
                emit_op(op)
        for op in dma_ops(u):
            emit_op(op)
        if u == 0:
            srd(e, 12, 28, 29, 4608 * 576 * 2)
            e.I('s_mul_i32 s45, s24, %d' % ACT_BYTES)
            e.I('s_add_u32 s45, s45, %d' % WS_P)
            srd_off(e, 20, 30, 31, 's45', ACT_BYTES)
    st(1)
    e.I('v_and_b32 v24, 3, v1')
    e.I('v_bfe_u32 v25, v1, 2, 2')
    e.I('v_bfe_u32 v26, v1, 4, 1')
    e.I('v_lshrrev_b32 v27, 5, v1')
    e.I('v_lshl_add_u32 v28, v27, 3, v25')
    e.I('v_mul_u32_u24 v28, 576, v28')
    e.I('v_lshrrev_b32 v29, 1, v24')
    e.I(f'v_mul_u32_u24 v30, {UP_OFF}, v29')
    e.I('v_add_u32 v28, v28, v30')
    e.I('v_lshl_add_u32 v28, v26, 4, v28')
    e.I('v_and_b32 v31, 1, v24')
    e.I('v_lshl_add_u32 v12, v31, 3, v28')
    e.I('v_lshl_add_u32 v28, v27, 2, v25')
    e.I('v_mul_u32_u24 v28, 576, v28')
    e.I('v_lshl_add_u32 v28, v26, 5, v28')
    e.I('v_lshl_add_u32 v28, v31, 4, v28')
    e.I('v_lshl_add_u32 v13, v29, 3, v28')
    for p_ in range(1, 4):
        e.I(f'v_add_u32 v{13+p_}, {2*SLOT*p_}, v13')
    e.wait_vm('stat')
    G = GB
    e.I(f'v_add_f32 v{G}, v{G}, v{G+2}');  e.I(f'v_add_f32 v{G+1}, v{G+1}, v{G+3}')
    e.I(f'v_add_f32 v{G+4}, v{G+4}, v{G+6}');  e.I(f'v_add_f32 v{G+5}, v{G+5}, v{G+7}')
    e.I(f'v_add_f32 v{G+8}, v{G+8}, v{G+10}');  e.I(f'v_add_f32 v{G+9}, v{G+9}, v{G+11}')
    e.I(f'v_add_f32 v{G+12}, v{G+12}, v{G+14}');  e.I(f'v_add_f32 v{G+13}, v{G+13}, v{G+15}')
    e.I(f'v_add_f32 v{G}, v{G}, v{G+4}');  e.I(f'v_add_f32 v{G+1}, v{G+1}, v{G+5}')
    e.I(f'v_add_f32 v{G+8}, v{G+8}, v{G+12}');  e.I(f'v_add_f32 v{G+9}, v{G+9}, v{G+13}')
    e.I(f'v_add_f32 v{G}, v{G}, v{G+8}');  e.I(f'v_add_f32 v{G+1}, v{G+1}, v{G+9}')
    e.I(f'v_mov_b32 v{G+2}, v{G}'); e.I(f'v_mov_b32 v{G+3}, v{G+1}')
    e.I(f'v_permlane32_swap_b32 v{G}, v{G+2}'); e.I(f'v_permlane32_swap_b32 v{G+1}, v{G+3}')
    e.I(f'v_add_f32 v{G}, v{G}, v{G+2}');  e.I(f'v_add_f32 v{G+1}, v{G+1}, v{G+3}')
    inv = 0x3ae38e39
    e.I(f'v_mul_f32 v{G}, {inv:#x}, v{G}')
    e.I(f'v_mul_f32 v{G+1}, {inv:#x}, v{G+1}')
    e.I(f'v_fma_f32 v{G+1}, -v{G}, v{G}, v{G+1}')
    e.I(f'v_max_f32 v{G+1}, 0, v{G+1}')
    e.I(f'v_add_f32 v{G+1}, 0x3727c5ac, v{G+1}')
    e.I(f'v_rsq_f32 v20, v{G+1}')
    e.I(f'v_mul_f32 v20, {LOG2E:#x}, v20')
    e.I(f'v_mul_f32 v21, v{G}, v20')
    e.I('v_sub_f32 v21, 0, v21')
    for op in norm_ops(0):
        emit_op(op)
    st(2)

    mf = []
    for u in range(36 - TAILK):
        for t in range(18):
            mf.append(dict(u=u, ph='A', s=u, t=t))
    for grp in range(2):
        for u in range(36 - TAILK, 36):
            for t in range(9 * grp, 9 * grp + 9):
                mf.append(dict(u=u, ph='A', s=u, t=t))
    for uu in range(18):
        hf, kb = uu // 9, uu % 9
        if kb == 8:
            for t in range(9):
                for ks in range(2):
                    mf.append(dict(u=36 + uu, ph='B', hf=hf, s=2 * kb + ks, ks=ks, t=t))
        else:
            for ks in range(2):
                for t in range(9):
                    mf.append(dict(u=36 + uu, ph='B', hf=hf, s=2 * kb + ks, ks=ks, t=t))
    NM = len(mf)
    first_rd, last_rd = {}, {}
    lastA, lastB, firstS = {}, {}, {}
    firstXuse, lastXuse = {}, {}
    for i, m in enumerate(mf):
        first_rd.setdefault(m['u'], i); last_rd[m['u']] = i
        if m['ph'] == 'A':
            lastA[m['t']] = i
            firstXuse.setdefault(m['s'], i); lastXuse[m['s']] = i
        else:
            lastB[(m['hf'], m['t'])] = i
            if m['hf'] == 0:
                firstS.setdefault(m['s'], i)

    cur_par = [0]
    def frag_reads(i):
        m = mf[i]
        f = FB + 4 * (i % NF)
        u = m['u']
        so = (u % 4) * SLOT
        if m['ph'] == 'A':
            par = (u // 4) & 1
            if par != cur_par[0]:
                e.I('v_add_u32 v12, s54, v12')
                e.I('s_sub_u32 s54, 0, s54')
                cur_par[0] = par
            base = 12
            o0 = so + 32 * m['t']; o1 = o0 + 4 * 576
        else:
            base = 13 + (u % 8) // 2
            so = (u % 2) * SLOT
            o0 = so + 16 * m['ks'] * 576 + 64 * m['t']; o1 = o0 + 8 * 576
        e.L(f'ds_read_b64_tr_b16 a[{f}:{f+1}], v{base} offset:{o0}', ('f', i))
        e.L(f'ds_read_b64_tr_b16 a[{f+2}:{f+3}], v{base} offset:{o1}', ('f', i))

    tasks = []
    for s in range(1, 36):
        rdy = max(firstXuse[s] - 18 if s < 36 - TAILK + 1 else firstXuse[s] - 9 * 2, lastXuse.get(s - 4, -1) + 1, 0)
        ops = norm_ops(s)
        if s + 3 < 36 + 0 and s + 3 >= 4:
            pass
        if s + 4 < 36:
            ops = ops + xload_ops(s + 4)
        tasks.append(Task(ops, rdy, firstXuse[s]))
    tasks.append(Task(xload_ops(4), 0, 4))
    def glu_ops(t):
        k, b = gu_block(t)
        ops = []
        hh = GB + 4 * t
        for hq in range(2):
            g = [b + 8 * hq + c for c in range(4)]
            u = [b + 8 * hq + 4 + c for c in range(4)]
            T = [24, 25, 26, 27]; U = [28, 29, 30, 31]
            if k == 'a':
                for c in range(4):
                    ops.append(f'v_accvgpr_read_b32 v{T[c]}, a{g[c]}')
                for c in range(4):
                    ops.append(f'v_accvgpr_read_b32 v{U[c]}, a{u[c]}')
                gs = [f'v{x}' for x in T]; us = [f'v{x}' for x in U]
            else:
                gs = [f'v{x}' for x in g]; us = [f'v{x}' for x in u]
            for c in range(4):
                ops.append(f'v_exp_f32 v{T[c]}, -{gs[c]}')
            for c in range(4):
                ops.append(f'v_add_f32 v{T[c]}, 1.0, v{T[c]}')
            for c in range(4):
                ops.append(f'v_rcp_f32 v{T[c]}, v{T[c]}')
            for c in range(4):
                ops.append(f'v_mul_f32 v{T[c]}, v{T[c]}, {us[c]}')
            ops.append(f'v_cvt_pk_bf16_f32 v{hh+2*hq}, v{T[0]}, v{T[1]}')
            ops.append(f'v_cvt_pk_bf16_f32 v{hh+2*hq+1}, v{T[2]}, v{T[3]}')
        return ops
    for t in range(18):
        tasks.append(Task([('I', o) for o in glu_ops(t)], lastA[t] + 4, firstS[t]))
    def store_ops(blk, half, t):
        kind, b = blk
        ops = []
        for q in range(2):
            r = b + 8 * q
            if kind == 'a':
                for c in range(8):
                    ops.append(('I', f'v_accvgpr_read_b32 v{24+c}, a{r+c}'))
                for c in range(4):
                    ops.append(('I', f'v_cvt_pk_bf16_f32 v{24+c}, v{24+2*c}, v{24+2*c+1}'))
                r = 24
            else:
                for c in range(4):
                    ops.append(('I', f'v_cvt_pk_bf16_f32 v{r+c}, v{r+2*c}, v{r+2*c+1}'))
            ops.append(('I', f's_mov_b32 s33, {((half*9+t)*2+q)*1024}'))
            ops.append(('V', f'buffer_store_dwordx4 v[{r}:{r+3}], v18, s[20:23], s33 offen', ('st', half, t, q)))
        return ops
    for t in range(9):
        tasks.append(Task(store_ops(out0_block(t), 0, t), lastB[(0, t)] + 4, NM - 40 + t))
    for t in range(9):
        tasks.append(Task(store_ops(out1_block(t), 1, t), lastB[(1, t)] + 4, NM + t))

    dma_q = []
    next_dma = [6]
    active = [None]

    def run_fillers(i, budget):
        n = 0
        while dma_q and n < 1:
            op = dma_q.pop(0)
            emit_op(op)
            budget -= 1
            if op[0] in 'VX':
                n += 1
        while True:
            forced = [tk for tk in tasks if tk.ops and tk.deadline <= i]
            tk = active[0] if active[0] is not None and active[0].ops else None
            if tk is None:
                cand = sorted([t_ for t_ in tasks if t_.ops and t_.ready <= i], key=lambda t_: t_.deadline)
                if not cand:
                    assert not forced
                    return
                tk = cand[0]
                active[0] = tk
            if budget <= 0 and not forced:
                return
            emit_op(tk.ops.pop(0)); budget -= 1

    def barrier_for(u, i):
        while dma_q:
            emit_op(dma_q.pop(0))
        e.wait_vm(('dma', u))
        e.I('s_barrier')
        while next_dma[0] < NU and last_rd[next_dma[0] - 8] <= i - 1 if next_dma[0] >= 8 else next_dma[0] < 8:
            dma_q.extend(dma_ops(next_dma[0])); next_dma[0] += 1

    barrier_for(0, 0)
    for i in range(D):
        frag_reads(i)
    L0, LN_IT = LSTART * 18, LITER
    for i in range(NM):
        m = mf[i]
        if loop and i >= L0 and (i - L0) % 72 == 0 and (i - L0) // 72 <= LN_IT:
            k = (i - L0) // 72
            if k > 0:
                e.I('s_sub_u32 s55, s55, 1')
                e.I('s_cbranch_scc1 L_k3_loop')
            else:
                e.I(f's_mov_b32 s55, {LN_IT - 1}')
                st(7)
            e.raw(f';@ITER {k}')
            if k == LN_IT:
                st(8)
        if i in (first_rd[36 - TAILK], first_rd[36], first_rd[45]):
            st({first_rd[36 - TAILK]: 3, first_rd[36]: 4, first_rd[45]: 5}[i])
        run_fillers(i, budgetA if i < first_rd[36 - TAILK] + 40 else budgetB)
        j = i + D
        if j < NM:
            if first_rd[mf[j]['u']] == j:
                barrier_for(mf[j]['u'], i)
            frag_reads(j)
        if i % 2 == 0:
            e.wait_lg(('f', min(i + 1, NM - 1)))
        f = FB + 4 * (i % NF)
        if m['ph'] == 'A':
            acc = rng(gu_block(m['t']))
            c = acc if m['s'] > 0 else '0'
            x = XN + 4 * (m['s'] % 4)
            e.I(f'v_mfma_f32_32x32x16_bf16 {acc}, a[{f}:{f+3}], v[{x}:{x+3}], {c}')
        else:
            acc = rng(out0_block(m['t']) if m['hf'] == 0 else out1_block(m['t']))
            c = acc if m['s'] > 0 else '0'
            hh = GB + 4 * m['s']
            e.I(f'v_mfma_f32_32x32x16_bf16 {acc}, a[{f}:{f+3}], v[{hh}:{hh+3}], {c}')
    st(6)
    run_fillers(NM + 100, 10000)
    st.dump()
    e.label('L_k3_done')
    e.I('s_endpgm')
    txt = e.finalize()
    if loop:
        lines = txt.split('\n')
        idx = [n for n, l in enumerate(lines) if l.startswith(';@ITER')]
        segs = [lines[idx[k] + 1: idx[k + 1]] for k in range(LN_IT)]
        for k in range(1, LN_IT):
            if segs[k] != segs[0]:
                for a, b in zip(segs[0], segs[k]):
                    if a != b:
                        raise Exception(f'loop body mismatch iter {k}: {a} | {b}')
                raise Exception(f'loop body length mismatch iter {k} {len(segs[0])} {len(segs[k])}')
        body = list(segs[0])
        assert body[-1].strip() == 's_cbranch_scc1 L_k3_loop'
        body[-1] = '    s_cbranch_scc0 L_k3_loop'
        lines = lines[:idx[0]] + ['L_k3_loop:'] + body + lines[idx[LN_IT] + 1:]
        txt = '\n'.join(lines)
    return txt + kd(name, 512, 256)
```

```python
import sys
from k1v4 import gen_k1, K1_LDS
from k2v3 import gen_k2, K2_LDS
from k3v3 import gen_k3, gen_k4, K3_LDS
def build(path, k3kw=None, header_comment='', stamps=False, k1kw=None, k2kw=None):
    fuse = (k3kw or {}).get('fuse', False)
    k4line = '' if fuse else '; @launch kernel=red_kernel grid=(256,1,1) block=(576,1,1) lds=0\n'
    hdr = header_comment + f"""; @launch kernel=qkv_kernel grid=(256,1,1) block=(256,1,1) lds={K1_LDS}
; @launch kernel=attn_kernel grid=(256,1,1) block=(512,1,1) lds={K2_LDS}
; @launch kernel=ffn_kernel grid=(256,1,1) block=(256,1,1) lds={K3_LDS}
{k4line}.amdgcn_target "amdgcn-amd-amdhsa--gfx950"
.text
"""
    open(path, 'w').write(hdr + gen_k1(stamps=stamps, **(k1kw or {})) + gen_k2(stamps=stamps, **(k2kw or {})) + gen_k3(**(k3kw or {})) + ('' if fuse else gen_k4()) + 'L_code_end:\n    s_endpgm\n')
if __name__ == '__main__':
    import os
    build('dev/' + os.environ.get('OUT', 'full.s'), stamps=True, k3kw=dict(stamps=True))
    if os.environ.get('K1EXP'):
        for nm, kw in (('e_a', dict()), ('e_b', dict(pkn=False)), ('e_c', dict(split=False)), ('e_d', dict(budgetA=3)), ('e_e', dict(budgetB=6))):
            build(f'dev/{nm}.s', stamps=True, k3kw=dict(stamps=True, **kw))
```

```python
WS_KV = 0
KV_HEAD_BYTES = 19 * 24 * 4
WS_PQ = 0x20000
ACT_BYTES = 2048 * 576 * 2
PQ_PITCH = 1168
PQ_BYTES = 2048 * PQ_PITCH
WS_H = WS_PQ + 0x250000
WS_P = WS_H + ACT_BYTES
LOG2E = 0x3fb8aa3b
NLOG2E = 0xbfb8aa3b

def kd(name, vgpr, agpr_off, sgpr=102):
    return f""".section .rodata,"a"
.p2align 6
.amdhsa_kernel {name}
  .amdhsa_next_free_vgpr {vgpr}
  .amdhsa_next_free_sgpr {sgpr}
  .amdhsa_accum_offset {agpr_off}
  .amdhsa_group_segment_fixed_size 0
  .amdhsa_kernarg_size 80
  .amdhsa_user_sgpr_count 2
  .amdhsa_user_sgpr_kernarg_segment_ptr 1
  .amdhsa_system_sgpr_workgroup_id_x 1
.end_amdhsa_kernel
.text
"""

def head(name):
    return f""".globl {name}
.p2align 8
.type {name},@function
{name}:
"""

def srd(e, d, lo, hi, nbytes):
    e.I(f's_mov_b32 s{d}, s{lo}')
    e.I(f's_and_b32 s{d+1}, s{hi}, 0xffff')
    e.I(f's_mov_b32 s{d+2}, {nbytes}')
    e.I(f's_mov_b32 s{d+3}, 0x00020000')

def srd_off(e, d, lo, hi, off, nbytes):
    e.I(f's_add_u32 s{d}, s{lo}, {off}')
    e.I(f's_addc_u32 s{d+1}, s{hi}, 0')
    e.I(f's_and_b32 s{d+1}, s{d+1}, 0xffff')
    e.I(f's_mov_b32 s{d+2}, {nbytes}')
    e.I(f's_mov_b32 s{d+3}, 0x00020000')

def ln_stats(e, XB, T, vrstd, vnb, tags, group=6):
    for i in range(8):
        e.I(f'v_mov_b32 v{T+i}, 0')
    e.I(f'v_mov_b32 v{T+8}, 0x3f803f80')
    for s in range(36):
        if s % group == 0:
            e.wait_vm(tags[min(s + group - 1, 35)])
        for j in range(4):
            r = XB + 4 * s + j
            e.I(f'v_dot2_f32_bf16 v{T+j}, v{r}, v{T+8}, v{T+j}')
            e.I(f'v_dot2_f32_bf16 v{T+4+j}, v{r}, v{r}, v{T+4+j}')
    e.I(f'v_add_f32 v{T}, v{T}, v{T+1}')
    e.I(f'v_add_f32 v{T+2}, v{T+2}, v{T+3}')
    e.I(f'v_add_f32 v{T+4}, v{T+4}, v{T+5}')
    e.I(f'v_add_f32 v{T+6}, v{T+6}, v{T+7}')
    e.I(f'v_add_f32 v{T}, v{T}, v{T+2}')
    e.I(f'v_add_f32 v{T+4}, v{T+4}, v{T+6}')
    e.I(f'v_mov_b32 v{T+1}, v{T}')
    e.I(f'v_mov_b32 v{T+5}, v{T+4}')
    e.I(f'v_permlane32_swap_b32 v{T}, v{T+1}')
    e.I(f'v_permlane32_swap_b32 v{T+4}, v{T+5}')
    e.I(f'v_add_f32 v{T}, v{T}, v{T+1}')
    e.I(f'v_add_f32 v{T+4}, v{T+4}, v{T+5}')
    inv = 0x3ae38e39
    e.I(f'v_mul_f32 v{T}, {inv:#x}, v{T}')
    e.I(f'v_mul_f32 v{T+4}, {inv:#x}, v{T+4}')
    e.I(f'v_fma_f32 v{T+4}, -v{T}, v{T}, v{T+4}')
    e.I(f'v_max_f32 v{T+4}, 0, v{T+4}')
    e.I(f'v_add_f32 v{T+4}, 0x3727c5ac, v{T+4}')
    e.I(f'v_rsq_f32 v{vrstd}, v{T+4}')
    e.I(f'v_mul_f32 v{vnb}, v{T}, v{vrstd}')
    e.I(f'v_sub_f32 v{vnb}, 0, v{vnb}')

def ln_norm_ops(XB, s, t0, t1, vrstd, vnb):
    ops = []
    for j in range(4):
        r = XB + 4 * s + j
        a, b = (t0, t1) if j % 2 == 0 else (t0 + 2, t1 + 2)
        ops.append(f'v_lshlrev_b32 v{a}, 16, v{r}')
        ops.append(f'v_and_b32 v{b}, 0xffff0000, v{r}')
        ops.append(f'v_fma_f32 v{a}, v{a}, v{vrstd}, v{vnb}')
        ops.append(f'v_fma_f32 v{b}, v{b}, v{vrstd}, v{vnb}')
        ops.append(f'v_cvt_pk_bf16_f32 v{r}, v{a}, v{b}')
    return ops

WS_ST = 0xF000
WS_STATS = WS_P + 16 * ACT_BYTES
STATS_BYTES = 2048 * 128
OOB = 0x7ff00000

import os
STAMP_OP = os.environ.get('STAMP_OP', 's_memtime')
class Stamps:
    def __init__(self, e, on, region):
        self.e, self.on, self.region, self.n = e, on, region, 0
    def __call__(self, k):
        if self.on:
            self.e.I(f'{STAMP_OP} s[{64+2*k}:{65+2*k}]')
            if k == 0:
                self.e.I('s_memrealtime s[98:99]')
            self.n = max(self.n, k + 1)
    def dump(self):
        if not self.on:
            return
        e = self.e
        e.I('s_waitcnt vmcnt(0)')
        k = self.n
        e.I(f'{STAMP_OP} s[{64+2*k}:{65+2*k}]')
        e.I('s_memrealtime s[100:101]')
        e.I('s_load_dwordx2 s[90:91], s[0:1], 72')
        e.I('s_waitcnt lgkmcnt(0)')
        srd_off(e, 92, 90, 91, (200 << 20) + self.region * 131072, 131072)
        e.I('s_lshl_b32 s96, s2, 3')
        e.I('s_add_u32 s96, s96, s3')
        e.I('s_lshl_b32 s96, s96, 6')
        e.I('v_mov_b32 v1, 0')
        for j in range(k + 1):
            e.I(f's_sub_u32 s97, s{64+2*j}, s64')
            e.I('v_mov_b32 v2, s97')
            e.I(f'buffer_store_dword v2, v1, s[92:95], s96 offen offset:{4*j}')
        e.I('s_sub_u32 s97, s100, s98')
        e.I('v_mov_b32 v2, s97')
        e.I('buffer_store_dword v2, v1, s[92:95], s96 offen offset:60')
        e.I('v_mov_b32 v2, s98')
        e.I('buffer_store_dword v2, v1, s[92:95], s96 offen offset:56')
```

```python
from asmlib import Em
from common import *

XSL = 16 * 1040
NXS = 3
XPART = NXS * XSL
SL = 32 * 384
NS = 6
NU = 18
K1_LDS = XPART + NS * SL
KVP = 264
AC = 64
CS = 128
FB = 144
NF = 20
XF = 36

def gen_k1(name='qkv_kernel', D=7, stamps=False, prefetch=True, twait=False, PF0=152, PFS=2, nodot=False, nocs=False, nodma=False, PRO=3, dgap=1, dn=2, LIT0=2, LIT1=7, DUM=1, nogram=False, nopatch=False, nobar=False):
    e = Em()
    st = Stamps(e, stamps, 0)
    e.raw(head(name))
    e.I('s_cmp_ge_u32 s2, 256')
    e.I('s_cbranch_scc1 L_k1_done')
    st(0)
    e.I('s_load_dwordx4 s[4:7], s[0:1], 0')
    e.I('s_load_dwordx4 s[28:31], s[0:1], 64')
    e.I('s_load_dwordx2 s[56:57], s[0:1], 16')
    e.I('s_load_dwordx4 s[76:79], s[0:1], 32')
    e.I('s_load_dwordx2 s[80:81], s[0:1], 48')
    e.I('s_getpc_b64 s[52:53]')
    e.label('L_k1_pc')
    e.I('s_lshr_b32 s26, s2, 3')
    e.I('s_lshl_b32 s54, s26, 5')
    e.I('v_add_u32 v251, s54, v0')
    e.I('v_lshlrev_b32 v251, 7, v251')
    e.I('v_cmp_gt_u32 vcc, 32, v0')
    e.I('v_min_u32 v251, L_code_end-L_k1_pc-4, v251')
    e.I('s_and_saveexec_b64 s[58:59], vcc')
    e.I('s_cbranch_execz L_k1_nopf')
    e.I('global_load_dword v252, v251, s[52:53]')
    e.label('L_k1_nopf')
    e.I('s_mov_b64 exec, -1')
    e.I('s_mul_i32 s47, s26, 288')
    e.I('s_and_b32 s48, s2, 1')
    e.I('s_mul_i32 s48, s48, 9216')
    e.I('s_add_u32 s47, s47, s48')
    e.I('v_add_u32 v4, s47, v0')
    e.I('v_lshlrev_b32 v4, 7, v4')
    e.I(f'v_mov_b32 v6, {OOB}')
    e.I('v_add_u32 v7, 0x8000, v4')
    e.I('v_cndmask_b32 v7, v6, v7, vcc')
    e.I('s_mul_i32 s47, s26, 162')
    e.I('v_cmp_gt_u32 vcc, 162, v0')
    e.I('v_min_u32 v5, 161, v0')
    e.I('v_add_u32 v5, s47, v5')
    e.I('v_mul_u32_u24 v11, 58255, v5')
    e.I('v_lshrrev_b32 v11, 19, v11')
    e.I('v_mul_u32_u24 v8, 9, v11')
    e.I('v_sub_u32 v8, v5, v8')
    e.I('v_mul_u32_u24 v9, 11, v8')
    e.I('v_lshrrev_b32 v9, 5, v9')
    e.I('v_mul_u32_u24 v10, 3, v9')
    e.I('v_sub_u32 v8, v8, v10')
    e.I('v_mul_u32_u24 v11, 3456, v11')
    e.I('v_mul_u32_u24 v9, 1152, v9')
    e.I('v_lshl_add_u32 v11, v8, 7, v11')
    e.I('s_bfe_u32 s48, s2, 0x20001')
    e.I('s_mul_i32 s48, s48, 288')
    e.I('s_and_b32 s48, s48, 0xff80')
    e.I('v_add3_u32 v5, v11, v9, s48')
    e.I('v_cndmask_b32 v5, v6, v5, vcc')
    e.I('v_lshrrev_b32 v1, 6, v0')
    e.I('v_readfirstlane_b32 s3, v1')
    e.I('v_and_b32 v1, 63, v0')
    e.I('s_waitcnt lgkmcnt(0)')
    srd(e, 8, 4, 5, ACT_BYTES)
    srd(e, 12, 6, 7, 576 * 1728 * 2)
    e.V('buffer_load_dword v252, v4, s[8:11], 0 offen', 'pf')
    e.V('buffer_load_dword v252, v5, s[12:15], 0 offen', 'pf')
    e.V('buffer_load_dword v252, v7, s[8:11], 0 offen', 'pf')
    if twait:
        e.I('s_waitcnt vmcnt(0)')
        st(6)
    e.I('s_and_b32 s24, s2, 1')
    e.I('s_lshl_b32 s24, s24, 3')
    e.I('s_and_b32 s27, s26, 7')
    e.I('s_add_u32 s24, s24, s27')
    e.I('s_bfe_u32 s25, s2, 0x20001')
    e.I('s_lshl_b32 s25, s25, 2')
    e.I('s_lshr_b32 s26, s26, 3')
    e.I('s_add_u32 s25, s25, s26')
    e.I('s_lshl_b32 s32, s24, 7')
    e.I('s_lshl_b32 s33, s3, 5')
    e.I('s_add_u32 s32, s32, s33')
    e.I('v_and_b32 v2, 31, v1')
    e.I('v_lshrrev_b32 v3, 5, v1')
    e.I('v_lshrrev_b32 v8, 3, v1')
    e.I('v_bfe_u32 v9, v1, 4, 1')
    e.I('v_lshlrev_b32 v9, 2, v9')
    e.I('v_and_b32 v10, 7, v1')
    e.I('v_xor_b32 v10, v10, v9')
    e.I('v_mul_u32_u24 v8, 1152, v8')
    e.I('v_lshl_add_u32 v4, v10, 4, v8')
    for i in range(1, 4):
        e.I(f'v_add_u32 v{4+i}, {i*8*1152}, v4')
    e.I('s_mul_i32 s44, s32, 1152')
    for i in range(3):
        e.I(f'v_add_u32 v12, {64*i}, v1')
        e.I('v_mul_u32_u24 v13, 2731, v12')
        e.I('v_lshrrev_b32 v13, 16, v13')
        e.I('v_mul_u32_u24 v14, 24, v13')
        e.I('v_sub_u32 v14, v12, v14')
        e.I('v_bfe_u32 v15, v13, 1, 1')
        e.I('v_lshlrev_b32 v15, 2, v15')
        e.I('v_xor_b32 v14, v14, v15')
        e.I('v_lshrrev_b32 v15, 3, v14')
        e.I('v_and_b32 v14, 7, v14')
        e.I('v_mul_u32_u24 v15, 1152, v15')
        e.I('v_lshl_add_u32 v15, v14, 4, v15')
        e.I('v_mul_u32_u24 v13, 3456, v13')
        e.I(f'v_add_u32 v{8+i}, v13, v15')
    e.I('s_mul_i32 s34, s25, 72')
    e.I('s_and_b32 s39, s34, 63')
    e.I('s_and_b32 s34, s34, 0xffc0')
    e.I('s_mul_i32 s35, s3, %d' % (8 * 3456))
    e.I('s_add_u32 s35, s35, s34')
    e.I('s_mul_i32 s36, s3, %d' % (4 * 1040))
    e.I('s_mul_i32 s38, s3, 3072')
    e.I(f's_add_u32 s38, s38, {XPART}')
    e.I('s_mov_b32 s62, s36')
    e.I('s_mov_b32 s63, s38')
    e.I('s_mov_b32 s46, 0')
    def dma_ops(u):
        ops = []
        if u % 2 == 0:
            for i in range(4):
                ops.append(('I', f's_add_u32 m0, s62, {i*1040}'))
                ops.append(('V', f'buffer_load_dwordx4 v{4+i}, s[8:11], s44 offen lds', ('d', u)))
            ops.append(('I', 's_add_u32 s44, s44, 128'))
        for i in range(3):
            ops.append(('I', f's_add_u32 m0, s63, {(u % 2) * SL + i*1024}'))
            ops.append(('V', f'buffer_load_dwordx4 v{8+i}, s[12:15], s35 offen lds', ('d', u)))
        ops.append(('I', f's_add_u32 s35, s35, {32*3456}'))
        if u % 2 == 1:
            ops.append(('G', [f's_add_u32 s62, s62, {XSL}', f's_add_u32 s63, s63, {2*SL}', 's_add_u32 s46, s46, 1',
                              's_cmp_eq_u32 s46, 3', 's_cselect_b32 s62, s36, s62', 's_cselect_b32 s63, s38, s63', 's_cselect_b32 s46, 0, s46']))
        return ops
    def emit(op):
        if op[0] == 'I':
            e.I(op[1])
        elif op[0] == 'G':
            for t_ in op[1]:
                e.I(t_)
        else:
            e.V(op[1], op[2])
    for u in range(PRO):
        for op in dma_ops(u):
            emit(op)
    srd_off(e, 16, 30, 31, WS_PQ, PQ_BYTES)
    srd_off(e, 20, 30, 31, WS_KV, 32 * KV_HEAD_BYTES)
    srd(e, 40, 28, 29, 256)
    e.I('s_lshl_b32 s37, s25, 2')
    e.I('v_mov_b32 v253, 1')
    e.I(f'v_mov_b32 v254, {OOB}')
    e.I('v_cmp_eq_u32 vcc, 0, v1')
    e.I('v_cndmask_b32 v254, v254, 0, vcc')
    e.I('s_cmp_lg_u32 s3, 3')
    e.I('s_cbranch_scc1 L_k1_noclaim')
    e.V('buffer_atomic_add v253, v254, s[40:43], s37 offen sc0', 'pf')
    e.label('L_k1_noclaim')
    st(1)
    e.I('v_and_b32 v12, 3, v1')
    e.I('v_bfe_u32 v13, v1, 2, 2')
    e.I('v_bfe_u32 v14, v1, 4, 1')
    e.I('v_lshl_add_u32 v15, v3, 3, v13')
    e.I('v_mul_u32_u24 v15, 384, v15')
    e.I(f'v_add_u32 v15, {XPART}, v15')
    e.I('v_lshl_add_u32 v26, v14, 2, v12')
    e.I('v_bfe_u32 v29, v13, 1, 1')
    e.I('v_lshlrev_b32 v29, 6, v29')
    e.I('s_lshl_b32 s45, s3, 3')
    for T in range(5):
        if T < 4:
            e.I(f'v_add_u32 v27, {8*T}, v26')
        else:
            e.I('v_add_u32 v27, s45, v26')
        e.I('v_min_u32 v27, 28, v27')
        e.I('v_mul_u32_u24 v28, 13, v27')
        e.I('v_lshrrev_b32 v28, 7, v28')
        e.I('v_mul_u32_u24 v30, 10, v28')
        e.I('v_sub_u32 v27, v27, v30')
        e.I('v_min_u32 v27, 8, v27')
        e.I('v_lshlrev_b32 v27, 3, v27')
        e.I('v_lshl_add_u32 v27, v28, 7, v27')
        e.I('v_add_u32 v27, s39, v27')
        e.I('v_xor_b32 v27, v27, v29')
        e.I(f'v_add_u32 v{16+T}, v27, v15')
    e.I('v_lshrrev_b32 v30, 3, v2')
    e.I('v_mul_u32_u24 v30, 1040, v30')
    e.I('v_and_b32 v31, 7, v2')
    e.I('v_lshl_add_u32 v30, v31, 7, v30')
    e.I('v_lshl_add_u32 v30, v3, 4, v30')
    e.I('v_add_u32 v30, s36, v30')
    e.I('v_bfe_u32 v31, v2, 1, 1')
    e.I('v_lshl_add_u32 v26, v31, 6, v30')
    e.I('v_xor_b32 v31, 1, v31')
    e.I('v_lshl_add_u32 v27, v31, 6, v30')
    if prefetch:
        e.I('s_and_b32 s82, s2, 7')
        e.I('s_lshr_b32 s83, s2, 3')
        e.I('s_lshl_b32 s83, s83, 2')
        e.I('s_add_u32 s83, s83, s3')
        e.I('s_mul_i32 s84, s83, 41')
        e.I('s_mul_i32 s85, s82, 1152')
        e.I('v_min_u32 v248, 40, v1')
        e.I('v_add_u32 v248, s84, v248')
        e.I('v_min_u32 v248, 5183, v248')
        e.I('v_mul_u32_u24 v249, 58255, v248')
        e.I('v_lshrrev_b32 v249, 19, v249')
        e.I('v_mul_u32_u24 v250, 9, v249')
        e.I('v_sub_u32 v250, v248, v250')
        e.I('v_mul_u32_u24 v249, 9216, v249')
        e.I('v_lshl_add_u32 v249, v250, 7, v249')
        e.I('v_add_u32 v249, s85, v249')
        e.I('v_lshlrev_b32 v248, 7, v248')
    e.I('v_mov_b32 v58, 0')
    pf_ops = {PF0 - 1: 'buffer_load_dword v59, v58, s[40:43], s37 offen offset:64 sc0 sc1'}
    if prefetch:
        pf_ops.update({PF0: 'global_load_dword v244, v248, s[56:57]', PF0 + PFS: 'global_load_dword v245, v249, s[76:77]',
              PF0 + 2 * PFS: 'global_load_dword v246, v249, s[78:79]'})
    for i in range(4):
        e.I(f'v_mov_b32 v{32+i}, 0x3f803f80')
    e.I('v_cmp_le_u32 s[60:61], 24, v2')
    NM = 36 * 5
    GR = 224
    e.I('s_mov_b32 s47, 0')
    def reads(i):
        s, T = i // 5, i % 5
        u, ks = s // 2, s % 2
        if T == 0 and s % 4 == 0 and s > 0:
            e.I('s_add_u32 s47, s47, 1')
            e.I('s_cmp_eq_u32 s47, 3')
            e.I(f's_cselect_b32 s48, {-4*SL}, {2*SL}' if False else f's_mov_b32 s48, {2*SL}')
            e.I(f's_mov_b32 s49, {XSL}')
            e.I(f's_cselect_b32 s48, {(-4*SL) & 0xffffffff:#x}, s48')
            e.I(f's_cselect_b32 s49, {(-2*XSL) & 0xffffffff:#x}, s49')
            e.I('s_cselect_b32 s47, 0, s47')
            for t in range(5):
                e.I(f'v_add_u32 v{16+t}, s48, v{16+t}')
            e.I('v_add_u32 v26, s49, v26')
            e.I('v_add_u32 v27, s49, v27')
        if T == 0:
            x = XF + 4 * (s % 4)
            e.L(f'ds_read_b128 v[{x}:{x+3}], v{26 + (s % 4) // 2} offset:{(s % 2)*32}', ('f', i))
        f = FB + 4 * (i % NF)
        o = (u % 2) * SL + ks * 16 * 384
        e.L(f'ds_read_b64_tr_b16 v[{f}:{f+1}], v{16+T} offset:{o}', ('f', i))
        e.L(f'ds_read_b64_tr_b16 v[{f+2}:{f+3}], v{16+T} offset:{o+4*384}', ('f', i))
    dq = []
    def barrier(u):
        while dq and any(op[0] == 'V' and op[2][1] <= u + 1 for op in dq):
            emit(dq.pop(0))
        e.wait_vm(('d', u))
        if not nobar: e.I('s_barrier')
        if u >= 2 and u + NS - 2 < NU + DUM:
            dq.extend(dma_ops(u + NS - 2))
    def zero_init():
        e.I('s_cmp_lg_u32 s3, 3')
        e.I('s_cbranch_scc1 L_k1_noinit')
        e.I('v_readfirstlane_b32 s45, v253')
        e.I('s_cmp_lg_u32 s45, 0')
        e.I('s_cbranch_scc1 L_k1_noinit')
        e.I('s_mul_i32 s45, s25, %d' % (2 * KV_HEAD_BYTES))
        e.I('v_lshlrev_b32 v255, 4, v1')
        e.I('v_cmp_gt_u32 vcc, 36, v1')
        e.I(f'v_mov_b32 v60, {OOB}')
        e.I('v_cndmask_b32 v60, v60, v255, vcc')
        for i in range(4):
            e.I(f'v_mov_b32 v{240+i}, 0')
        for i in range(4):
            e.I(f'buffer_store_dwordx4 v[240:243], v{255 if i < 3 else 60}, s[20:23], s45 offen offset:{1024*i} sc0 sc1')
        e.I('s_waitcnt vmcnt(0)')
        e.I('v_mov_b32 v253, 1')
        e.I('buffer_atomic_add v253, v254, s[40:43], s37 offen offset:64')
        e.label('L_k1_noinit')
    for r in list(range(AC, CS + 16)) + list(range(GR, GR + 16)):
        e.I(f'v_mov_b32 v{r}, 0')
    barrier(0)
    for u in range(PRO, NS):
        dq.extend(dma_ops(u))
    for i in range(D):
        reads(i)
    NMX = NM + 40
    IT0, NIT = LIT0, LIT1 - LIT0
    for i in range(NM):
        s, T = i // 5, i % 5
        if i % 20 == 0 and IT0 <= i // 20 <= LIT1:
            k = i // 20 - IT0
            if k == 0:
                zero_init()
                e.I(f's_mov_b32 s55, {NIT - 1}')
            else:
                e.I('s_sub_u32 s55, s55, 1')
                e.I('s_cbranch_scc1 L_k1_loop')
            e.raw(f';@K1ITER {k}')
        if i in pf_ops:
            e.V(pf_ops[i], ('pfl', i))
        j = i + D
        n = 0
        while dq and n < dn:
            op = dq.pop(0); emit(op); n += 1
        if j < NM:
            if j % 10 == 0:
                barrier(j // 10)
            reads(j)
        e.wait_lg(('f', i))
        x = XF + 4 * (s % 4)
        f = FB + 4 * (i % NF)
        if T < 4:
            acc = f'v[{AC+16*T}:{AC+16*T+15}]'
            e.I(f'v_mfma_f32_32x32x16_bf16 {acc}, v[{f}:{f+3}], v[{x}:{x+3}], {acc}')
        else:
            acc = f'v[{CS}:{CS+15}]'
            e.I(f'v_mfma_f32_32x32x16_bf16 {acc}, v[{f}:{f+3}], v[32:35], {acc}')
        if T == 1 and not nopatch:
            e.wait_lg(('f', i + 2))
            f3 = FB + 4 * ((i + 2) % NF)
            for c in range(4):
                e.I(f'v_cndmask_b32 v{f3+c}, v{f3+c}, v32, s[60:61]')
        if T == 2 and not nogram:
            acc = f'v[{GR}:{GR+15}]'
            e.I(f'v_mfma_f32_32x32x16_bf16 {acc}, v[{x}:{x+3}], v[{x}:{x+3}], {acc}')
    e.wait_vm(('d', NU + DUM - 1))
    st(2)
    e.I('v_and_b32 v36, 1, v2');  e.I('v_cmp_eq_u32 s[62:63], 1, v36')
    e.I('v_and_b32 v36, 2, v2');  e.I('v_cmp_eq_u32 s[50:51], 2, v36')
    e.I('v_and_b32 v36, 8, v2');  e.I('v_cmp_eq_u32 s[48:49], 8, v36')
    e.I('v_and_b32 v36, 16, v2'); e.I('v_cmp_eq_u32 s[46:47], 16, v36')
    for k_ in range(8):
        e.I(f'v_cndmask_b32 v{GR+2*k_}, v{GR+2*k_}, v{GR+2*k_+1}, s[62:63]')
    for k_ in range(4):
        e.I(f'v_cndmask_b32 v{GR+4*k_}, v{GR+4*k_}, v{GR+4*k_+2}, s[50:51]')
    for k_ in range(2):
        e.I(f'v_cndmask_b32 v{GR+8*k_}, v{GR+8*k_}, v{GR+8*k_+4}, s[48:49]')
    e.I(f'v_cndmask_b32 v40, v{GR}, v{GR+8}, s[46:47]')
    e.I('v_bfe_u32 v36, v2, 2, 1')
    e.I('v_cmp_eq_u32 vcc, v36, v3')
    e.I('v_cndmask_b32 v40, 0, v40, vcc')
    e.I('v_mov_b32 v41, v40')
    e.I('v_permlane32_swap_b32 v40, v41')
    e.I('v_add_f32 v40, v40, v41')
    e.I(f'v_mov_b32 v36, v{AC+48+12}')
    inv = 0x3ae38e39
    e.I(f'v_mul_f32 v36, {inv:#x}, v36')
    e.I(f'v_mul_f32 v40, {inv:#x}, v40')
    e.I('v_fma_f32 v40, -v36, v36, v40')
    e.I('v_max_f32 v40, 0, v40')
    e.I('v_add_f32 v40, 0x3727c5ac, v40')
    e.I('v_rsq_f32 v44, v40')
    e.I('v_mul_f32 v45, v36, v44')
    e.I('v_sub_f32 v45, 0, v45')
    CSL = 40960
    e.I('s_barrier')
    e.I('s_lshl_b32 s45, s3, 7')
    e.I('v_lshl_add_u32 v46, v3, 4, s45')
    e.I('v_cmp_eq_u32 vcc, 0, v2')
    e.I('s_and_saveexec_b64 s[58:59], vcc')
    for a in range(4):
        e.L(f'ds_write_b128 v46, v[{CS+4*a}:{CS+4*a+3}] offset:{CSL + 32*a}', 'w')
    e.I('s_mov_b64 exec, -1')
    e.I('v_lshlrev_b32 v46, 4, v3')
    e.I('s_waitcnt lgkmcnt(0)')
    e.lg_done = len(e.lg)
    e.I('s_barrier')
    groups_all = [(T, a) for T in range(4) for a in range(4) if (T, a) != (3, 3)]
    for gi, (T, a) in enumerate(groups_all):
        e.L(f'ds_read_b128 v[{FB+4*gi}:{FB+4*gi+3}], v46 offset:{CSL + 128*T + 32*a}', ('c', gi))
    def R(T, a, c):
        return AC + 16 * T + 4 * a + c
    for gi, (T, a) in enumerate(groups_all):
        e.wait_lg(('c', gi))
        for c in range(4):
            e.I(f'v_mul_f32 v{FB+4*gi+c}, v45, v{FB+4*gi+c}')
        for c in range(4):
            e.I(f'v_fma_f32 v{R(T,a,c)}, v{R(T,a,c)}, v44, v{FB+4*gi+c}')
    st(3)
    rs = [R(T, a, c) for (T, a) in groups_all[:10] for c in range(4)]
    ts = [FB + i for i in range(40)]
    for r, t in zip(rs, ts):
        e.I(f'v_min_f32 v{t}, 0, v{r}')
    for r, t in zip(rs, ts):
        e.I(f'v_mul_f32 v{t}, {LOG2E:#x}, v{t}')
    for r, t in zip(rs, ts):
        e.I(f'v_exp_f32 v{t}, v{t}')
    for r, t in zip(rs, ts):
        e.I(f'v_max_f32 v{r}, 0x358637bd, v{r}') if False else e.I(f'v_max_f32 v{r}, 0, v{r}')
    for r, t in zip(rs, ts):
        e.I(f'v_add_f32 v{t}, 0x358637bd, v{t}')
    for r, t in zip(rs, ts):
        e.I(f'v_add_f32 v{r}, v{r}, v{t}')
    def P(T, a):
        return 184 + (T * 4 + a) * 2
    for (T, a) in groups_all:
        e.I(f'v_cvt_pk_bf16_f32 v{P(T,a)}, v{R(T,a,0)}, v{R(T,a,1)}')
        e.I(f'v_cvt_pk_bf16_f32 v{P(T,a)+1}, v{R(T,a,2)}, v{R(T,a,3)}')
    e.I('v_add_u32 v30, s33, v2')
    e.I(f'v_mul_u32_u24 v30, {KVP}, v30')
    def pos(col):
        return (col // 18) * 64 + (col % 18) * 2
    DUMMY = 60
    groups = [((1, 1), 0, 0), ((1, 2), 0, 2), ((1, 3), 0, 4), ((2, 0), 0, 6), ((2, 1), 0, 8),
              ((2, 2), 128, 0), ((2, 3), 128, 2), ((3, 0), 128, 4), ((3, 1), 128, 6), ((3, 2), 128, 8)]
    e.I('v_lshl_add_u32 v31, v3, 3, v30')
    k = 0
    for (T, a), part, ch0 in groups:
        for pr in range(2):
            x0 = part + pos(4 * ch0 + 2 * pr)
            x1 = part + pos(4 * (ch0 + 1) + 2 * pr) if ch0 < 8 else DUMMY
            d = x1 - x0
            if d == 8:
                e.L(f'ds_write_b32 v31, v{P(T,a)+pr} offset:{x0}', 'w')
            else:
                t = 47 + (k % 4); k += 1
                e.I(f'v_mov_b32 v{t}, {d}')
                e.I(f'v_mad_i32_i24 v{t}, v3, v{t}, v30')
                e.L(f'ds_write_b32 v{t}, v{P(T,a)+pr} offset:{x0}', 'w')
    e.I('v_lshl_add_u32 v51, v3, 6, v30')
    e.I('v_mov_b32 v52, 0x3f80')
    e.L('ds_write_b32 v51, v52 offset:164', 'w')
    e.I('s_mul_i32 s45, s25, 72')
    e.I('v_add_u32 v53, s32, v2')
    e.I(f'v_mul_u32_u24 v53, {PQ_PITCH}, v53')
    e.I('v_lshl_add_u32 v54, v3, 3, v53')
    e.I('v_add_u32 v55, s45, v54')
    e.I(f'v_mov_b32 v57, {OOB}')
    e.I('v_cmp_eq_u32 s[48:49], 0, v3')
    e.I('v_cndmask_b32 v56, v57, v55, s[48:49]')
    e.I('s_waitcnt lgkmcnt(0)')
    e.lg_done = len(e.lg)
    e.I('s_barrier')
    st(4)
    if stamps:
        st(5)
    e.I('s_cmp_ge_u32 s3, 2')
    e.I('s_cbranch_scc1 L_k1_stores')
    e.I('v_lshl_add_u32 v15, v3, 3, v13')
    e.I(f'v_mul_u32_u24 v15, {KVP}, v15')
    e.I('v_lshl_add_u32 v15, v14, 5, v15')
    e.I('v_lshl_add_u32 v15, v12, 3, v15')
    e.I('s_lshl_b32 s50, s3, 6')
    e.I('v_add_u32 v15, s50, v15')
    KA = 128
    for ks in range(8):
        r = 64 + 8 * ks
        e.L(f'ds_read_b64_tr_b16 v[{r}:{r+1}], v15 offset:{ks*16*KVP + 128}', ('k', ks))
        e.L(f'ds_read_b64_tr_b16 v[{r+2}:{r+3}], v15 offset:{ks*16*KVP + 128 + 4*KVP}', ('k', ks))
        e.L(f'ds_read_b64_tr_b16 v[{r+4}:{r+5}], v15 offset:{ks*16*KVP}', ('k', ks))
        e.L(f'ds_read_b64_tr_b16 v[{r+6}:{r+7}], v15 offset:{ks*16*KVP + 4*KVP}', ('k', ks))
        if ks >= 2:
            k2 = ks - 2
            e.wait_lg(('k', k2))
            r2 = 64 + 8 * k2
            e.I(f'v_mfma_f32_32x32x16_bf16 v[{KA}:{KA+15}], v[{r2}:{r2+3}], v[{r2+4}:{r2+7}], {"v[%d:%d]" % (KA, KA+15) if k2 else "0"}')
    e.I('s_lshl_b32 s50, s25, 1')
    e.I('s_add_u32 s50, s50, s3')
    e.I('s_mul_i32 s50, s50, %d' % KV_HEAD_BYTES)
    e.I('v_mul_u32_u24 v18, 384, v3')
    e.I('v_lshl_add_u32 v18, v2, 2, v18')
    e.I('v_cmp_gt_u32 vcc, 18, v2')
    e.I('v_cndmask_b32 v18, v57, v18, vcc')
    e.I('v_cndmask_b32 v19, v57, v18, s[48:49]')
    for k2 in (6, 7):
        e.wait_lg(('k', k2))
        r2 = 64 + 8 * k2
        e.I(f'v_mfma_f32_32x32x16_bf16 v[{KA}:{KA+15}], v[{r2}:{r2+3}], v[{r2+4}:{r2+7}], v[{KA}:{KA+15}]')
    e.I('s_waitcnt vmcnt(%d)' % (3 if prefetch else 0))
    e.label('L_k1_poll')
    e.I('v_readfirstlane_b32 s51, v59')
    e.I('s_cmp_lg_u32 s51, 0')
    e.I('s_cbranch_scc1 L_k1_go')
    e.I('s_sleep 2')
    e.I('buffer_load_dword v59, v58, s[40:43], s37 offen offset:64 sc0 sc1')
    e.I('s_waitcnt vmcnt(0)')
    e.I('s_branch L_k1_poll')
    e.label('L_k1_go')
    st(5)
    e.I('s_nop 7')
    e.I('s_nop 3')
    for a in range(2):
        for c in range(4):
            e.I(f'buffer_atomic_add_f32 v{KA+4*a+c}, v18, s[20:23], s50 offen offset:{(8*a+c)*96}')
    for c in range(3):
        e.I(f'buffer_atomic_add_f32 v{KA+8+c}, v19, s[20:23], s50 offen offset:{(16+c)*96}')
    e.label('L_k1_stores')
    for a in range(4):
        e.I(f'buffer_store_dwordx2 v[{P(0,a)}:{P(0,a)+1}], v55, s[16:19], 0 offen offset:{16*a}')
    e.I(f'buffer_store_dwordx2 v[{P(1,0)}:{P(1,0)+1}], v56, s[16:19], 0 offen offset:64')
    e.I('s_cmp_lg_u32 s25, 15')
    e.I('s_cbranch_scc1 L_k1_fin')
    e.I('v_mov_b32 v60, 0')
    e.I('v_mov_b32 v61, 0')
    e.I('buffer_store_dwordx2 v[60:61], v54, s[16:19], 0 offen offset:1152')
    e.label('L_k1_fin')
    st.dump()
    e.label('L_k1_done')
    e.I('s_endpgm')
    txt = e.finalize()
    lines = txt.split('\n')
    idx = [n for n, l in enumerate(lines) if l.startswith(';@K1ITER')]
    segs = [lines[idx[k] + 1: idx[k + 1]] for k in range(len(idx) - 1)]
    for k in range(1, len(segs)):
        if segs[k] != segs[0]:
            for a, b in zip(segs[0], segs[k]):
                if a != b:
                    raise Exception(f'K1 loop body mismatch iter {k}: {a} | {b}')
            raise Exception('K1 loop body length mismatch')
    body = list(segs[0])
    assert body[-1].strip() == 's_cbranch_scc1 L_k1_loop'
    body[-1] = '    s_cbranch_scc0 L_k1_loop'
    lines = lines[:idx[0]] + ['L_k1_loop:'] + body + lines[idx[-1] + 1:]
    return '\n'.join(lines) + kd(name, 256, 256)

for g in range(192):
    assert (g * 2731) >> 16 == g // 24, g
for c in range(29):
    assert (c * 13) >> 7 == c // 10, c
```

```python
from asmlib import Em
from common import *

PQ_LDS = 64 * PQ_PITCH
WO_LDS = PQ_LDS
K2_LDS = PQ_LDS + 576 * 144 + 1024

def gen_k2(name='attn_kernel', stamps=False):
    e = Em()
    st = Stamps(e, stamps, 1)
    e.raw(head(name))
    e.I('s_cmp_ge_u32 s2, 256')
    e.I('s_cbranch_scc1 L_k2_done')
    st(0)
    e.I('s_load_dwordx2 s[4:5], s[0:1], 0')
    e.I('s_load_dwordx2 s[6:7], s[0:1], 16')
    e.I('s_load_dwordx2 s[30:31], s[0:1], 72')
    e.I('s_load_dwordx2 s[84:85], s[0:1], 48')
    e.I('v_lshrrev_b32 v1, 6, v0')
    e.I('v_readfirstlane_b32 s3, v1')
    e.I('v_and_b32 v1, 63, v0')
    e.I('s_and_b32 s24, s2, 7')
    e.I('s_lshl_b32 s24, s24, 2')
    e.I('s_lshr_b32 s25, s2, 3')
    e.I('s_and_b32 s26, s25, 3')
    e.I('s_add_u32 s24, s24, s26')
    e.I('s_lshr_b32 s25, s25, 2')
    e.I('v_and_b32 v2, 15, v1')
    e.I('v_lshrrev_b32 v3, 4, v1')
    e.I(f'v_mov_b32 v6, {OOB}')
    e.I('v_min_u32 v5, 2, v3')
    e.I('v_lshlrev_b32 v5, 5, v5')
    e.I('s_lshl_b32 s28, s3, 13')
    e.I(f's_add_u32 s28, s28, {WO_LDS}')
    e.I('v_add_u32 v5, s28, v5')
    e.I('v_mul_u32_u24 v4, 96, v2')
    e.I('v_add_u32 v4, v4, v5')
    e.I('v_cmp_gt_u32 s[60:61], 3, v3')
    e.I('v_and_b32 v8, 3, v2')
    e.I('v_cmp_eq_u32 s[44:45], 2, v8')
    e.I('v_and_b32 v7, 1, v2')
    e.I('v_cndmask_b32 v7, v7, 2, s[44:45]')
    e.I('v_mul_u32_u24 v7, 96, v7')
    e.I('v_add3_u32 v7, v7, v5, 0')
    e.I('v_add_u32 v7, 1536, v7')
    e.I('v_cmp_gt_u32 s[46:47], 2, v2')
    e.I('s_or_b64 s[44:45], s[44:45], s[46:47]')
    e.I('s_and_b64 s[62:63], s[44:45], s[60:61]')
    e.I('s_mul_i32 s27, s3, %d' % (4 * KV_HEAD_BYTES))
    e.I('v_lshlrev_b32 v8, 4, v1')
    e.I('v_lshlrev_b32 v9, 4, v0')
    e.I('s_mul_i32 s29, s24, %d' % PQ_LDS)
    e.I('s_lshl_b32 s33, s3, 10')
    e.I('v_mul_u32_u24 v10, 57, v1')
    e.I('v_lshrrev_b32 v10, 9, v10')
    e.I('v_mul_u32_u24 v11, 9, v10')
    e.I('v_sub_u32 v11, v1, v11')
    e.I('v_mul_u32_u24 v10, 1152, v10')
    e.I('v_lshl_add_u32 v10, v11, 4, v10')
    e.I('s_mul_i32 s34, s25, 144')
    e.I('s_mul_i32 s35, s3, %d' % (6 * 1152))
    e.I('s_add_u32 s35, s35, s34')
    e.I('v_add_u32 v10, s35, v10')
    e.I('s_mul_i32 s48, s3, 864')
    e.I('s_lshr_b32 s56, s2, 3')
    e.I('s_mul_i32 s57, s56, 73')
    e.I('s_and_b32 s58, s2, 7')
    e.I('s_mul_i32 s58, s58, 2336')
    e.I('s_add_u32 s57, s57, s58')
    e.I('v_add_u32 v24, s57, v0')
    e.I('v_lshlrev_b32 v24, 7, v24')
    e.I('v_cmp_gt_u32 vcc, 73, v0')
    e.I('v_cndmask_b32 v24, v6, v24, vcc')
    e.I('s_mul_i32 s57, s56, 15')
    e.I('v_subrev_u32 v25, 128, v0')
    e.I('v_cmp_gt_u32 vcc, 15, v25')
    e.I('v_add_u32 v25, s57, v25')
    e.I('v_lshlrev_b32 v25, 7, v25')
    e.I('v_cndmask_b32 v25, v6, v25, vcc')
    e.I('s_waitcnt lgkmcnt(0)')
    srd_off(e, 20, 30, 31, WS_KV, 32 * KV_HEAD_BYTES)
    srd_off(e, 16, 30, 31, WS_PQ, PQ_BYTES)
    e.V('buffer_load_dword v26, v24, s[16:19], 0 offen', 'pf')
    e.V('buffer_load_dword v27, v25, s[20:23], 0 offen', 'pf')
    KVR = 64
    e.I('s_mov_b32 m0, s28')
    for j in range(8):
        e.V(f'buffer_load_dwordx4 v8, s[20:23], s27 offen offset:{1024*(j%4)} lds', ('kv', j))
        if j == 3:
            e.I('s_add_u32 m0, m0, 0x1000')
            e.I('s_add_u32 s27, s27, 0x1000')
    e.I('s_mov_b32 m0, s33')
    for j in range(10):
        if j == 9:
            e.I('s_cmp_lg_u32 s3, 0')
            e.I('s_cbranch_scc1 L_k2_skip_pq')
        e.V('buffer_load_dwordx4 v9, s[16:19], s29 offen lds', ('pq', j) if j < 9 else 'pf')
        if j < 9:
            e.I('s_add_u32 m0, m0, 0x2000')
            e.I('s_add_u32 s29, s29, 0x2000')
    e.label('L_k2_skip_pq')
    e.wait_vm(('kv', 7))
    for hh in range(4):
        for tl, vo in ((0, 4), (1, 7)):
            r = KVR + (hh * 2 + tl) * 8
            o = hh * KV_HEAD_BYTES - 8 * hh
            if hh % 2 == 0:
                e.L(f'ds_read_b128 v[{r}:{r+3}], v{vo} offset:{o}', ('kvr', hh))
                e.L(f'ds_read_b128 v[{r+4}:{r+7}], v{vo} offset:{o+16}', ('kvr', hh))
            else:
                for c in range(4):
                    e.L(f'ds_read_b64 v[{r+2*c}:{r+2*c+1}], v{vo} offset:{o+8*c}', ('kvr', hh))
    e.I('s_waitcnt lgkmcnt(0)')
    e.lg_done = len(e.lg)
    st(1)
    e.I(f'v_mul_u32_u24 v14, {PQ_PITCH}, v2')
    e.I('s_mul_i32 s57, s3, 144')
    e.I('v_add_u32 v14, s57, v14')
    e.I('v_lshl_add_u32 v15, v3, 3, v14')
    e.I('v_min_u32 v16, 2, v3')
    e.I('v_lshl_add_u32 v14, v16, 4, v14')
    e.I('v_cmp_eq_u32 s[58:59], 0, v3')
    KF = 128
    for f in range(8):
        r = KVR + f * 8
        for c in range(4):
            e.I(f'v_cvt_pk_bf16_f32 v{KF+4*f+c}, v{r+2*c}, v{r+2*c+1}')
        for c in range(4):
            e.I(f'v_cndmask_b32 v{KF+4*f+c}, 0, v{KF+4*f+c}, s[{60 if f % 2 == 0 else 62}:{61 if f % 2 == 0 else 63}]')
    st(2)
    e.I('s_waitcnt vmcnt(0)')
    e.I('s_barrier')
    st(3)
    PB = 64
    ACC = 160
    for mt in range(4):
        mo = mt * 16 * PQ_PITCH
        for hh in range(4):
            r = PB + (mt * 4 + hh) * 4
            e.L(f'ds_read_b128 v[{r}:{r+3}], v14 offset:{mo + 32*hh}', ('b', mt, hh))
    srd(e, 12, 6, 7, 576 * 576 * 2)
    srd(e, 8, 4, 5, ACT_BYTES)
    e.I(f's_add_u32 m0, s48, {WO_LDS}')
    e.I('s_mov_b32 s49, 0')
    e.I('s_mov_b32 s50, -1')
    e.I('s_mov_b32 s51, 0x3fffff')
    e.I('s_mov_b64 exec, s[50:51]')
    for j in range(12):
        e.V('buffer_load_dwordx4 v10, s[12:15], s49 offen lds', ('wo', j))
        if j < 11:
            e.I('s_add_u32 m0, m0, 6912')
            e.I(f's_add_u32 s49, s49, {48*1152}')
    e.I('s_mov_b64 exec, -1')
    e.I('s_and_b32 s52, s3, 3')
    e.I('s_lshr_b32 s53, s3, 2')
    e.I('s_lshl_b32 s35, s24, 6')
    e.I('s_lshl_b32 s54, s52, 4')
    e.I('s_add_u32 s35, s35, s54')
    e.I('v_add_u32 v12, s35, v2')
    e.I('v_mul_u32_u24 v13, 1152, v12')
    e.I('v_lshl_add_u32 v13, v3, 3, v13')
    e.I('s_mul_i32 s55, s53, 96')
    e.I('s_add_u32 s56, s55, s34')
    e.I('v_add_u32 v13, s56, v13')
    XR = 40
    for j in range(3):
        e.V(f'buffer_load_dwordx2 v[{XR+2*j}:{XR+2*j+1}], v13, s[8:11], 0 offen offset:{32*j}', ('x', j))
    e.I('s_lshr_b32 s82, s2, 3')
    e.I('s_lshl_b32 s82, s82, 3')
    e.I('s_add_u32 s82, s82, s3')
    e.I('s_mul_i32 s82, s82, 21')
    e.I('s_and_b32 s83, s2, 7')
    e.I('s_mul_i32 s83, s83, 5184')
    e.I('v_min_u32 v46, 20, v1')
    e.I('v_add_u32 v46, s82, v46')
    e.I('v_min_u32 v46, 5183, v46')
    e.I('v_add_u32 v46, s83, v46')
    e.I('v_lshlrev_b32 v46, 7, v46')
    e.V('global_load_dword v47, v46, s[84:85]', ('pfl', 0))
    srd_off(e, 36, 30, 31, WS_H, ACT_BYTES)
    srd_off(e, 40, 30, 31, WS_STATS, STATS_BYTES)
    for half in range(2):
        for idx in range(8 * half, 8 * half + 8):
            mt, hh = idx // 4, idx % 4
            r = PB + idx * 4
            acc = ACC + (idx % 8) * 8
            e.wait_lg(('b', mt, hh))
            e.I(f'v_mfma_f32_16x16x32_bf16 v[{acc}:{acc+3}], v[{KF+8*hh}:{KF+8*hh+3}], v[{r}:{r+3}], 0')
            e.I(f'v_mfma_f32_16x16x32_bf16 v[{acc+4}:{acc+7}], v[{KF+8*hh+4}:{KF+8*hh+7}], v[{r}:{r+3}], 0')
        accs = [ACC + k * 8 for k in range(8)]
        for a in accs:
            e.I(f'v_add_f32 v{a+6}, 0x358637bd, v{a+6}')
        for a in accs:
            e.I(f'v_rcp_f32 v{a+6}, v{a+6}')
        for c in range(6):
            for a in accs:
                e.I(f'v_mul_f32 v{a+c}, v{a+c}, v{a+6}')
        for a in accs:
            e.I(f'v_cvt_pk_bf16_f32 v{a}, v{a}, v{a+1}')
            e.I(f'v_cvt_pk_bf16_f32 v{a+1}, v{a+2}, v{a+3}')
            e.I(f'v_cvt_pk_bf16_f32 v{a+2}, v{a+4}, v{a+5}')
        for mt in (2 * half, 2 * half + 1):
            if mt > 0:
                e.I(f'v_add_u32 v{20+mt}, {mt*16*PQ_PITCH}, v15')
        for k, a in enumerate(accs):
            mt, hh = 2 * half + k // 4, k % 4
            wb = 15 if mt == 0 else 20 + mt
            if hh % 2 == 0:
                e.L(f'ds_write_b64 v{wb}, v[{a}:{a+1}] offset:{36*hh}', 'w')
            else:
                e.L(f'ds_write2_b32 v{wb}, v{a}, v{a+1} offset0:{9*hh} offset1:{9*hh+1}', 'w')
        e.I('s_mov_b64 exec, s[58:59]')
        for k, a in enumerate(accs):
            mt, hh = 2 * half + k // 4, k % 4
            e.L(f'ds_write_b32 v15, v{a+2} offset:{mt*16*PQ_PITCH + 36*hh + 32}', 'w')
        e.I('s_mov_b64 exec, -1')
    st(4)
    e.I('s_mul_i32 s57, s52, %d' % (16 * PQ_PITCH))
    e.I(f'v_mul_u32_u24 v14, {PQ_PITCH}, v2')
    e.I('v_lshl_add_u32 v14, v3, 4, v14')
    e.I('v_add_u32 v14, s57, v14')
    e.I('v_and_b32 v18, 3, v1')
    e.I('v_bfe_u32 v19, v1, 2, 2')
    e.I('v_lshl_add_u32 v19, v3, 3, v19')
    e.I('v_mul_u32_u24 v19, 144, v19')
    e.I('v_lshl_add_u32 v19, v18, 3, v19')
    e.I(f's_add_u32 s57, s55, {WO_LDS}')
    e.I('v_add_u32 v19, s57, v19')
    e.I(f'v_add_u32 v18, {9*32*144}, v19')
    e.I('s_waitcnt vmcnt(4) lgkmcnt(0)')
    e.lg_done = len(e.lg)
    e.I('s_barrier')
    st(5)
    NB = 3
    def rd(s):
        bb = 64 + (s % NB) * 16
        e.L(f'ds_read_b128 v[{bb}:{bb+3}], v14 offset:{64*s}', ('g', s))
        base = 19 if s < 9 else 18
        so = (s % 9) * 32 * 144
        for T in range(3):
            r = bb + 4 + 4 * T
            e.L(f'ds_read_b64_tr_b16 v[{r}:{r+1}], v{base} offset:{so + 32*T}', ('g', s))
            e.L(f'ds_read_b64_tr_b16 v[{r+2}:{r+3}], v{base} offset:{so + 32*T + 4*144}', ('g', s))
    rd(0); rd(1)
    OA = 128
    for s in range(18):
        if s + 2 < 18:
            rd(s + 2)
        e.wait_lg(('g', s))
        bb = 64 + (s % NB) * 16
        for T in range(3):
            c = f'v[{OA+4*T}:{OA+3+4*T}]' if s > 0 else '0'
            e.I(f'v_mfma_f32_16x16x32_bf16 v[{OA+4*T}:{OA+3+4*T}], v[{bb+4+4*T}:{bb+7+4*T}], v[{bb}:{bb+3}], {c}')
    st(6)
    e.I('v_lshrrev_b32 v20, 5, v12')
    e.I('v_mul_u32_u24 v20, %d, v20' % (36 * 1024))
    e.I('v_and_b32 v21, 31, v12')
    e.I('v_lshl_add_u32 v20, v21, 4, v20')
    e.I('s_mul_i32 s57, s25, 72')
    e.I('s_mul_i32 s56, s53, 48')
    e.I('s_add_u32 s57, s57, s56')
    e.I('v_lshl_add_u32 v21, v3, 2, s57')
    e.I('v_lshrrev_b32 v22, 3, v21')
    e.I('v_lshl_add_u32 v20, v22, 9, v20')
    e.I('v_and_b32 v22, 7, v21')
    e.I('v_lshl_add_u32 v20, v22, 1, v20')
    e.I('v_lshl_add_u32 v23, v3, 2, s56')
    e.I('v_mov_b32 v30, 0')
    e.I('v_mov_b32 v31, 0')
    e.I('v_mov_b32 v28, 0x3f803f80')
    e.I('s_waitcnt vmcnt(1)')
    for T in range(3):
        a = OA + 4 * T
        x = XR + 2 * T
        e.I(f'v_lshlrev_b32 v24, 16, v{x}')
        e.I(f'v_and_b32 v25, 0xffff0000, v{x}')
        e.I(f'v_lshlrev_b32 v26, 16, v{x+1}')
        e.I(f'v_and_b32 v27, 0xffff0000, v{x+1}')
        e.I(f'v_cmp_gt_u32 vcc, {72 - 16*T}, v23')
        for c in range(4):
            e.I(f'v_add_f32 v{a+c}, v{a+c}, v{24+c}')
        e.I(f'v_cvt_pk_bf16_f32 v{a}, v{a}, v{a+1}')
        e.I(f'v_cvt_pk_bf16_f32 v{a+1}, v{a+2}, v{a+3}')
        e.I(f'v_cndmask_b32 v{32+T}, v6, v20, vcc')
        e.V(f'buffer_store_dwordx2 v[{a}:{a+1}], v{32+T}, s[36:39], 0 offen offset:{1024*T}', ('st', T))
        e.I(f'v_cndmask_b32 v{a+2}, 0, v{a}, vcc')
        e.I(f'v_cndmask_b32 v{a+3}, 0, v{a+1}, vcc')
        e.I(f'v_dot2_f32_bf16 v30, v{a+2}, v28, v30')
        e.I(f'v_dot2_f32_bf16 v31, v{a+2}, v{a+2}, v31')
        e.I(f'v_dot2_f32_bf16 v30, v{a+3}, v28, v30')
        e.I(f'v_dot2_f32_bf16 v31, v{a+3}, v{a+3}, v31')
    for sw in ('v_permlane16_swap_b32', 'v_permlane32_swap_b32'):
        e.I('v_mov_b32 v36, v30')
        e.I('v_mov_b32 v37, v31')
        e.I(f'{sw} v30, v36')
        e.I(f'{sw} v31, v37')
        e.I('v_add_f32 v30, v30, v36')
        e.I('v_add_f32 v31, v31, v37')
    e.I('v_lshrrev_b32 v38, 5, v12')
    e.I('v_lshlrev_b32 v38, 12, v38')
    e.I('v_and_b32 v39, 31, v12')
    e.I('v_lshl_add_u32 v38, v39, 4, v38')
    e.I('s_and_b32 s54, s25, 3')
    e.I('s_lshl_b32 s54, s54, 10')
    e.I('s_lshr_b32 s56, s25, 2')
    e.I('s_lshl_b32 s56, s56, 9')
    e.I('s_add_u32 s54, s54, s56')
    e.I('s_lshl_b32 s56, s53, 3')
    e.I('s_add_u32 s54, s54, s56')
    e.I('v_add_u32 v38, s54, v38')
    e.I('v_cndmask_b32 v38, v6, v38, s[58:59]')
    e.V('buffer_store_dwordx2 v[30:31], v38, s[40:43], 0 offen', ('st', 9))
    st.dump()
    e.label('L_k2_done')
    e.I('s_endpgm')
    return e.finalize() + kd(name, 224, 224)

for l in range(64):
    assert (l * 57) >> 9 == l // 9
```

```python
from asmlib import Em, Ins
from common import *

SLOT = 18496
NSLOT = 8
UP_OFF = 9248
K3_LDS = SLOT * NSLOT
NF = 8
XR = 32
XN = 48
GB = 64
FB = 224

def gu_block(t):
    return ('v', GB + 16 * t) if t < 12 else ('a', 16 * (t - 12))
def out0_block(t):
    return ('a', 96 + 16 * t) if t < 8 else ('v', XR)
def out1_block(t):
    if t < 7:
        return ('v', GB + 16 * (5 + t))
    return ('v', XN) if t == 7 else ('a', 0)
def rng(kb, n=16):
    return f'{kb[0]}[{kb[1]}:{kb[1]+n-1}]'

class Task:
    def __init__(self, ops, ready, deadline):
        self.ops = list(ops); self.ready = ready; self.deadline = deadline

def gen_k3(name='ffn_kernel', D=6, budgetA=2, budgetB=4, stamps=False, loop=True, TAILK=4, LSTART=5, LITER=6, stflag=' sc0 sc1', budgetC=2, pk=True, fuse=False, ldflag=' sc1', pollflag=' sc1'):
    e = Em()
    st = Stamps(e, stamps, 2)
    e.raw(head(name))
    e.I('s_cmp_ge_u32 s2, 256')
    e.I('s_cbranch_scc1 L_k3_done')
    st(0)
    e.I('s_load_dwordx4 s[4:7], s[0:1], 32')
    e.I('s_load_dwordx2 s[28:29], s[0:1], 48')
    e.I('s_load_dwordx2 s[30:31], s[0:1], 72')
    e.I('s_load_dwordx4 s[56:59], s[0:1], 56')
    e.I('v_lshrrev_b32 v1, 6, v0')
    e.I('v_readfirstlane_b32 s3, v1')
    e.I('v_and_b32 v1, 63, v0')
    e.I('s_and_b32 s24, s2, 7')
    e.I('s_lshl_b32 s24, s24, 1')
    e.I('s_bfe_u32 s25, s2, 0x10003')
    e.I('s_add_u32 s24, s24, s25')
    e.I('s_lshr_b32 s25, s2, 4')
    e.I('s_mov_b32 s34, -1')
    e.I('s_mov_b32 s35, 0')
    e.I('s_and_b32 s36, s3, 1')
    e.I('s_lshr_b32 s37, s3, 1')
    e.I('s_mul_i32 s26, s37, %d' % UP_OFF)
    e.I('s_mul_i32 s38, s36, 4608')
    e.I('s_add_u32 s26, s26, s38')
    e.I('s_mul_i32 s27, s3, 4608')
    e.I('s_mul_i32 s38, s36, %d' % (8 * 9216))
    e.I('s_mul_i32 s39, s24, 576')
    e.I('s_add_u32 s38, s38, s39')
    e.I('s_mul_i32 s39, s3, %d' % (8 * 1152))
    e.I('s_mul_i32 s40, s24, %d' % (288 * 1152))
    e.I('s_add_u32 s39, s39, s40')
    e.I('s_movk_i32 s41, 9216')
    e.I('s_movk_i32 s42, 1152')
    e.I('s_lshl_b32 s43, s25, 2')
    e.I('s_add_u32 s43, s43, s3')
    e.I('s_mul_i32 s44, s43, %d' % (36 * 1024))
    e.I('v_lshlrev_b32 v18, 4, v1')
    e.I('v_add_u32 v18, s44, v18')
    e.I('s_lshl_b32 s45, s43, 12')
    e.I('v_lshl_add_u32 v22, v1, 4, s45')
    for j in range(5):
        e.I(f'v_add_u32 v24, {64*j}, v1')
        e.I('v_mul_u32_u24 v25, 1821, v24')
        e.I('v_lshrrev_b32 v25, 16, v25')
        e.I('v_mul_u32_u24 v26, 36, v25')
        e.I('v_sub_u32 v26, v24, v26')
        e.I('v_lshlrev_b32 v26, 4, v26')
        jo = 1024 * min(j, 3)
        if jo:
            e.I(f'v_subrev_u32 v26, {jo}, v26')
        e.I(f'v_mad_u32_u24 v{2+j}, v25, s41, v26')
        e.I(f'v_add_u32 v{2+j}, s38, v{2+j}')
        e.I(f'v_mad_u32_u24 v{7+j}, v25, s42, v26')
        e.I(f'v_add_u32 v{7+j}, s39, v{7+j}')
    e.I('s_waitcnt lgkmcnt(0)')
    e.I('s_cmp_eq_u32 s37, 0')
    e.I('s_cselect_b32 s8, s4, s6')
    e.I('s_cselect_b32 s9, s5, s7')
    e.I('s_and_b32 s9, s9, 0xffff')
    e.I('s_mov_b32 s10, %d' % (576 * 4608 * 2))
    e.I('s_mov_b32 s11, 0x00020000')
    srd_off(e, 48, 30, 31, WS_STATS, STATS_BYTES)
    srd_off(e, 16, 30, 31, WS_H, ACT_BYTES)
    for j in range(4):
        e.V(f'buffer_load_dwordx4 v[{GB+4*j}:{GB+4*j+3}], v22, s[48:51], 0 offen offset:{1024*j}', 'stat')
    e.I('s_mov_b32 s32, 0')
    e.I('s_mov_b32 s47, 0')
    e.I('s_mov_b32 s52, s26')
    e.I('s_lshl_b32 s53, s26, 1')
    e.I(f's_add_u32 s53, s53, {4*SLOT}')
    e.I(f's_mov_b32 s54, {4*SLOT}')
    e.I('s_mov_b32 s46, 0xffff0000')

    NU = 54
    def dma_ops(u):
        ops = []
        p = u % 4
        if u < 36:
            if p == 0 and u > 0:
                ops.append(('I', 's_sub_u32 s52, s53, s52'))
            ops.append(('I', f's_add_u32 m0, s52, {p*SLOT}'))
            vb, sr = 2, 8
        else:
            uu = u - 36
            hf, kb = uu // 9, uu % 9
            ops.append(('I', f's_mov_b32 s32, {kb*32*1152 + hf*576}'))
            ops.append(('I', f's_add_u32 m0, s27, {(u%8)*SLOT}'))
            vb, sr = 7, 12
        for j in range(4):
            ops.append(('V', f'buffer_load_dwordx4 v{vb+j}, s[{sr}:{sr+3}], s32 offen offset:{1024*j} lds', ('dma', u)))
        ops.append(('I', 's_add_u32 m0, m0, 0x400'))
        ops.append(('X', f'buffer_load_dwordx4 v{vb+4}, s[{sr}:{sr+3}], s32 offen offset:3072 lds', ('dma', u)))
        if u < 36:
            ops.append(('I', f's_add_u32 s32, s32, {16*9216}'))
        return ops
    def xload_ops(s):
        r = XR + 4 * (s % 4)
        return [('V', f'buffer_load_dwordx4 v[{r}:{r+3}], v18, s[16:19], s47 offen', ('x', s)),
                ('I', 's_add_u32 s47, s47, 0x400')]
    def emit_op(op):
        if op[0] == 'I':
            e.I(op[1])
        elif op[0] == 'V':
            e.V(op[1], op[2])
        elif op[0] == 'W':
            e.wait_vm(op[1])
        elif op[0] == 'X':
            e.I('s_mov_b64 exec, s[34:35]')
            e.V(op[1], op[2])
            e.I('s_mov_b64 exec, -1')
    def norm_ops(s):
        ops = [('W', ('x', s))]
        for j in range(4):
            r = XR + 4 * (s % 4) + j
            d = XN + 4 * (s % 4) + j
            a, b = (24, 25) if j % 2 == 0 else (26, 27)
            ops.append(('I', f'v_lshlrev_b32 v{a}, 16, v{r}'))
            ops.append(('I', f'v_and_b32 v{b}, s46, v{r}'))
            ops.append(('I', f'v_fma_f32 v{a}, v{a}, v20, v21'))
            ops.append(('I', f'v_fma_f32 v{b}, v{b}, v20, v21'))
            ops.append(('I', f'v_cvt_pk_bf16_f32 v{d}, v{a}, v{b}'))
        return ops

    for u in range(6):
        if u < 4:
            for op in xload_ops(u):
                emit_op(op)
        for op in dma_ops(u):
            emit_op(op)
        if u == 0:
            srd(e, 12, 28, 29, 4608 * 576 * 2)
            e.I('s_mul_i32 s45, s24, %d' % ACT_BYTES)
            e.I('s_add_u32 s45, s45, %d' % WS_P)
            srd_off(e, 20, 30, 31, 's45', ACT_BYTES)
    st(1)
    e.I('v_and_b32 v24, 3, v1')
    e.I('v_bfe_u32 v25, v1, 2, 2')
    e.I('v_bfe_u32 v26, v1, 4, 1')
    e.I('v_lshrrev_b32 v27, 5, v1')
    e.I('v_lshl_add_u32 v28, v27, 3, v25')
    e.I('v_mul_u32_u24 v28, 576, v28')
    e.I('v_lshrrev_b32 v29, 1, v24')
    e.I(f'v_mul_u32_u24 v30, {UP_OFF}, v29')
    e.I('v_add_u32 v28, v28, v30')
    e.I('v_lshl_add_u32 v28, v26, 4, v28')
    e.I('v_and_b32 v31, 1, v24')
    e.I('v_lshl_add_u32 v12, v31, 3, v28')
    e.I('v_lshl_add_u32 v28, v27, 2, v25')
    e.I('v_mul_u32_u24 v28, 576, v28')
    e.I('v_lshl_add_u32 v28, v26, 5, v28')
    e.I('v_lshl_add_u32 v28, v31, 4, v28')
    e.I('v_lshl_add_u32 v13, v29, 3, v28')
    for p_ in range(1, 4):
        e.I(f'v_add_u32 v{13+p_}, {2*SLOT*p_}, v13')
    e.wait_vm('stat')
    G = GB
    e.I(f'v_add_f32 v{G}, v{G}, v{G+2}');  e.I(f'v_add_f32 v{G+1}, v{G+1}, v{G+3}')
    e.I(f'v_add_f32 v{G+4}, v{G+4}, v{G+6}');  e.I(f'v_add_f32 v{G+5}, v{G+5}, v{G+7}')
    e.I(f'v_add_f32 v{G+8}, v{G+8}, v{G+10}');  e.I(f'v_add_f32 v{G+9}, v{G+9}, v{G+11}')
    e.I(f'v_add_f32 v{G+12}, v{G+12}, v{G+14}');  e.I(f'v_add_f32 v{G+13}, v{G+13}, v{G+15}')
    e.I(f'v_add_f32 v{G}, v{G}, v{G+4}');  e.I(f'v_add_f32 v{G+1}, v{G+1}, v{G+5}')
    e.I(f'v_add_f32 v{G+8}, v{G+8}, v{G+12}');  e.I(f'v_add_f32 v{G+9}, v{G+9}, v{G+13}')
    e.I(f'v_add_f32 v{G}, v{G}, v{G+8}');  e.I(f'v_add_f32 v{G+1}, v{G+1}, v{G+9}')
    e.I(f'v_mov_b32 v{G+2}, v{G}'); e.I(f'v_mov_b32 v{G+3}, v{G+1}')
    e.I(f'v_permlane32_swap_b32 v{G}, v{G+2}'); e.I(f'v_permlane32_swap_b32 v{G+1}, v{G+3}')
    e.I(f'v_add_f32 v{G}, v{G}, v{G+2}');  e.I(f'v_add_f32 v{G+1}, v{G+1}, v{G+3}')
    inv = 0x3ae38e39
    e.I(f'v_mul_f32 v{G}, {inv:#x}, v{G}')
    e.I(f'v_mul_f32 v{G+1}, {inv:#x}, v{G+1}')
    e.I(f'v_fma_f32 v{G+1}, -v{G}, v{G}, v{G+1}')
    e.I(f'v_max_f32 v{G+1}, 0, v{G+1}')
    e.I(f'v_add_f32 v{G+1}, 0x3727c5ac, v{G+1}')
    e.I(f'v_rsq_f32 v20, v{G+1}')
    e.I(f'v_mul_f32 v20, {NLOG2E:#x}, v20')
    e.I(f'v_mul_f32 v21, v{G}, v20')
    e.I('v_sub_f32 v21, 0, v21')
    for op in norm_ops(0):
        emit_op(op)
    st(2)

    mf = []
    for u in range(36 - TAILK):
        for t in range(18):
            mf.append(dict(u=u, ph='A', s=u, t=t))
    for grp in range(2):
        for u in range(36 - TAILK, 36):
            for t in range(9 * grp, 9 * grp + 9):
                mf.append(dict(u=u, ph='A', s=u, t=t))
    for uu in range(18):
        hf, kb = uu // 9, uu % 9
        if kb == 8:
            for t in range(9):
                for ks in range(2):
                    mf.append(dict(u=36 + uu, ph='B', hf=hf, s=2 * kb + ks, ks=ks, t=t))
        else:
            for ks in range(2):
                for t in range(9):
                    mf.append(dict(u=36 + uu, ph='B', hf=hf, s=2 * kb + ks, ks=ks, t=t))
    NM = len(mf)
    first_rd, last_rd = {}, {}
    lastA, lastB, firstS = {}, {}, {}
    firstXuse, lastXuse = {}, {}
    for i, m in enumerate(mf):
        first_rd.setdefault(m['u'], i); last_rd[m['u']] = i
        if m['ph'] == 'A':
            lastA[m['t']] = i
            firstXuse.setdefault(m['s'], i); lastXuse[m['s']] = i
        else:
            lastB[(m['hf'], m['t'])] = i
            if m['hf'] == 0:
                firstS.setdefault(m['s'], i)

    cur_par = [0]
    def frag_reads(i):
        m = mf[i]
        f = FB + 4 * (i % NF)
        u = m['u']
        so = (u % 4) * SLOT
        if m['ph'] == 'A':
            par = (u // 4) & 1
            if par != cur_par[0]:
                e.I('v_add_u32 v12, s54, v12')
                e.I('s_sub_u32 s54, 0, s54')
                cur_par[0] = par
            base = 12
            o0 = so + 32 * m['t']; o1 = o0 + 4 * 576
        else:
            base = 13 + (u % 8) // 2
            so = (u % 2) * SLOT
            o0 = so + 16 * m['ks'] * 576 + 64 * m['t']; o1 = o0 + 8 * 576
        e.L(f'ds_read_b64_tr_b16 a[{f}:{f+1}], v{base} offset:{o0}', ('f', i))
        e.L(f'ds_read_b64_tr_b16 a[{f+2}:{f+3}], v{base} offset:{o1}', ('f', i))

    tasks = []
    for s in range(1, 36):
        rdy = max(firstXuse[s] - 18 if s < 36 - TAILK + 1 else firstXuse[s] - 9 * 2, lastXuse.get(s - 4, -1) + 1, 0)
        ops = norm_ops(s)
        if s + 3 < 36 + 0 and s + 3 >= 4:
            pass
        if s + 4 < 36:
            ops = ops + xload_ops(s + 4)
        tasks.append(Task(ops, rdy, firstXuse[s]))
    tasks.append(Task(xload_ops(4), 0, 4))
    def glu_ops(t):
        k, b = gu_block(t)
        ops = []
        hh = GB + 4 * t
        for hq in range(2):
            g = [b + 8 * hq + c for c in range(4)]
            u = [b + 8 * hq + 4 + c for c in range(4)]
            T = [24, 25, 26, 27]; U = [28, 29, 30, 31]
            if k == 'a':
                for c in range(4):
                    ops.append(f'v_accvgpr_read_b32 v{T[c]}, a{g[c]}')
                for c in range(4):
                    ops.append(f'v_accvgpr_read_b32 v{U[c]}, a{u[c]}')
                gs = [f'v{x}' for x in T]; us = [f'v{x}' for x in U]
            else:
                gs = [f'v{x}' for x in g]; us = [f'v{x}' for x in u]
            for c in range(4):
                ops.append(f'v_exp_f32 v{T[c]}, {gs[c]}')
            if pk:
                ub = int(us[0][1:])
                for c in (0, 2):
                    ops.append(f'v_pk_add_f32 v[{T[c]}:{T[c]+1}], v[{T[c]}:{T[c]+1}], 1.0 op_sel_hi:[1,0]')
            else:
                for c in range(4):
                    ops.append(f'v_add_f32 v{T[c]}, 1.0, v{T[c]}')
            for c in range(4):
                ops.append(f'v_rcp_f32 v{T[c]}, v{T[c]}')
            if pk:
                for c in (0, 2):
                    ops.append(f'v_pk_mul_f32 v[{T[c]}:{T[c]+1}], v[{T[c]}:{T[c]+1}], v[{ub+c}:{ub+c+1}]')
            else:
                for c in range(4):
                    ops.append(f'v_mul_f32 v{T[c]}, v{T[c]}, {us[c]}')
            ops.append(f'v_cvt_pk_bf16_f32 v{hh+2*hq}, v{T[0]}, v{T[1]}')
            ops.append(f'v_cvt_pk_bf16_f32 v{hh+2*hq+1}, v{T[2]}, v{T[3]}')
        return ops
    for t in range(18):
        tasks.append(Task([('I', o) for o in glu_ops(t)], lastA[t] + 4, firstS[t]))
    def store_ops(blk, half, t):
        kind, b = blk
        ops = []
        for q in range(2):
            r = b + 8 * q
            if kind == 'a':
                for c in range(8):
                    ops.append(('I', f'v_accvgpr_read_b32 v{24+c}, a{r+c}'))
                for c in range(4):
                    ops.append(('I', f'v_cvt_pk_bf16_f32 v{24+c}, v{24+2*c}, v{24+2*c+1}'))
                r = 24
            else:
                for c in range(4):
                    ops.append(('I', f'v_cvt_pk_bf16_f32 v{r+c}, v{r+2*c}, v{r+2*c+1}'))
            ops.append(('I', f's_mov_b32 s33, {((half*9+t)*2+q)*1024}'))
            ops.append(('V', f'buffer_store_dwordx4 v[{r}:{r+3}], v18, s[20:23], s33 offen{stflag}', ('st', half, t, q)))
        return ops
    for t in range(9):
        tasks.append(Task(store_ops(out0_block(t), 0, t), lastB[(0, t)] + 4, NM - 40 + t))
    for t in range(9):
        tasks.append(Task(store_ops(out1_block(t), 1, t), lastB[(1, t)] + 4, NM + t))

    dma_q = []
    next_dma = [6]
    active = [None]

    def run_fillers(i, budget):
        n = 0
        while dma_q and n < 1:
            op = dma_q.pop(0)
            emit_op(op)
            budget -= 1
            if op[0] in 'VX':
                n += 1
        while True:
            forced = [tk for tk in tasks if tk.ops and tk.deadline <= i]
            tk = active[0] if active[0] is not None and active[0].ops else None
            if tk is None:
                cand = sorted([t_ for t_ in tasks if t_.ops and t_.ready <= i], key=lambda t_: t_.deadline)
                if not cand:
                    assert not forced
                    return
                tk = cand[0]
                active[0] = tk
            if budget <= 0 and not forced:
                return
            emit_op(tk.ops.pop(0)); budget -= 1

    def barrier_for(u, i):
        while dma_q:
            emit_op(dma_q.pop(0))
        e.wait_vm(('dma', u))
        e.I('s_barrier')
        while next_dma[0] < NU and last_rd[next_dma[0] - 8] <= i - 1 if next_dma[0] >= 8 else next_dma[0] < 8:
            dma_q.extend(dma_ops(next_dma[0])); next_dma[0] += 1

    barrier_for(0, 0)
    for i in range(D):
        frag_reads(i)
    L0, LN_IT = LSTART * 18, LITER
    for i in range(NM):
        m = mf[i]
        if loop and i >= L0 and (i - L0) % 72 == 0 and (i - L0) // 72 <= LN_IT:
            k = (i - L0) // 72
            if k > 0:
                e.I('s_sub_u32 s55, s55, 1')
                e.I('s_cbranch_scc1 L_k3_loop')
            else:
                e.I(f's_mov_b32 s55, {LN_IT - 1}')
                st(7)
            e.raw(f';@ITER {k}')
            if k == LN_IT:
                st(8)
        if i in (first_rd[36 - TAILK], first_rd[36], first_rd[45]):
            st({first_rd[36 - TAILK]: 3, first_rd[36]: 4, first_rd[45]: 5}[i])
        run_fillers(i, budgetA if i < first_rd[36 - TAILK] + 40 else (budgetB if i < first_rd[45] or i > NM - 20 else budgetC))
        j = i + D
        if j < NM:
            if first_rd[mf[j]['u']] == j:
                barrier_for(mf[j]['u'], i)
            frag_reads(j)
        if i % 2 == 0:
            e.wait_lg(('f', min(i + 1, NM - 1)))
        f = FB + 4 * (i % NF)
        if m['ph'] == 'A':
            acc = rng(gu_block(m['t']))
            c = acc if m['s'] > 0 else '0'
            x = XN + 4 * (m['s'] % 4)
            e.I(f'v_mfma_f32_32x32x16_bf16 {acc}, a[{f}:{f+3}], v[{x}:{x+3}], {c}')
        else:
            acc = rng(out0_block(m['t']) if m['hf'] == 0 else out1_block(m['t']))
            c = acc if m['s'] > 0 else '0'
            hh = GB + 4 * m['s']
            e.I(f'v_mfma_f32_32x32x16_bf16 {acc}, a[{f}:{f+3}], v[{hh}:{hh+3}], {c}')
    st(6)
    run_fillers(NM + 100, 10000)
    if fuse:
        srd(e, 8, 58, 59, 256)
        srd(e, 12, 56, 57, ACT_BYTES)
        srd_off(e, 48, 30, 31, WS_P, 16 * ACT_BYTES)
        e.I('s_lshl_b32 s36, s25, 2')
        e.I('v_mov_b32 v2, 0')
        e.I('v_mov_b32 v3, 1')
        e.I(f'v_mov_b32 v4, {OOB}')
        e.I('v_cmp_eq_u32 vcc, 0, v0')
        e.I('v_cndmask_b32 v5, v4, 0, vcc')
        e.I('s_mul_i32 s37, s25, 144')
        e.I('s_mul_i32 s38, s24, 9')
        e.I('s_add_u32 s37, s37, s38')
        e.I('s_add_u32 s37, s37, s3')
        e.I('v_and_b32 v6, 31, v1')
        e.I('v_lshrrev_b32 v7, 5, v1')
        for r in range(3):
            e.I(f's_add_u32 s38, s37, {4*r}')
            e.I('s_lshl_b32 s39, s38, 10')
            e.I(f'v_lshl_add_u32 v{8+r}, v1, 4, s39')
            e.I('s_mul_i32 s40, s38, 1821')
            e.I('s_lshr_b32 s40, s40, 16')
            e.I('s_mul_i32 s41, s40, 36')
            e.I('s_sub_u32 s41, s38, s41')
            e.I('s_lshl_b32 s40, s40, 5')
            e.I('s_lshl_b32 s41, s41, 5')
            e.I(f'v_add_u32 v{12+r}, s40, v6')
            e.I(f'v_mul_u32_u24 v{12+r}, 1152, v{12+r}')
            e.I(f'v_lshl_add_u32 v{12+r}, v7, 4, v{12+r}')
            e.I(f'v_add_u32 v{12+r}, s41, v{12+r}')
        e.I('v_cmp_gt_u32 vcc, 64, v0')
        e.I('v_cndmask_b32 v10, v4, v10, vcc')
        e.I('v_cndmask_b32 v14, v4, v14, vcc')
        for r in range(3):
            e.I(f'buffer_load_dwordx4 v[{32+4*r}:{35+4*r}], v{8+r}, s[16:19], 0 offen')
        e.I('s_waitcnt vmcnt(0)')
        e.I('s_barrier')
        st(9)
        e.I('s_cmp_lg_u32 s3, 0')
        e.I('s_cbranch_scc1 L_k3_go')
        e.I('buffer_atomic_add v3, v5, s[8:11], s36 offen')
        e.label('L_k3_poll')
        e.I(f'buffer_load_dword v16, v2, s[8:11], s36 offen{pollflag}')
        e.I('s_waitcnt vmcnt(0)')
        e.I('v_readfirstlane_b32 s42, v16')
        e.I('s_cmp_ge_u32 s42, 16')
        e.I('s_cbranch_scc1 L_k3_go')
        e.I('s_sleep 4')
        e.I('s_branch L_k3_poll')
        e.label('L_k3_go')
        e.I('s_barrier')
        st(10)
        PR = 48
        def loads(r):
            e.I('s_mov_b32 s43, 0')
            for j in range(16):
                b = PR + 64 * r + 4 * j
                e.I(f'buffer_load_dwordx4 v[{b}:{b+3}], v{8+r}, s[48:51], s43 offen{ldflag}')
                if j < 15:
                    e.I(f's_add_u32 s43, s43, {ACT_BYTES}')
        def reduce(r, younger):
            A = 240
            for j in range(16):
                e.I(f's_waitcnt vmcnt({younger + 15 - j})')
                for c in range(4):
                    b = PR + 64 * r + 4 * j + c
                    if j == 0:
                        e.I(f'v_lshlrev_b32 v{A+2*c}, 16, v{b}')
                        e.I(f'v_and_b32 v{A+1+2*c}, s46, v{b}')
                    else:
                        t = 24 + 2 * (c % 2)
                        e.I(f'v_lshlrev_b32 v{t}, 16, v{b}')
                        e.I(f'v_and_b32 v{t+1}, s46, v{b}')
                        e.I(f'v_add_f32 v{A+2*c}, v{A+2*c}, v{t}')
                        e.I(f'v_add_f32 v{A+1+2*c}, v{A+1+2*c}, v{t+1}')
            for c in range(4):
                h = 32 + 4 * r + c
                t = 24 + 2 * (c % 2)
                e.I(f'v_lshlrev_b32 v{t}, 16, v{h}')
                e.I(f'v_and_b32 v{t+1}, s46, v{h}')
                e.I(f'v_fma_f32 v{A+2*c}, v{A+2*c}, v17, v{t}')
                e.I(f'v_fma_f32 v{A+1+2*c}, v{A+1+2*c}, v17, v{t+1}')
            for c in range(4):
                e.I(f'v_cvt_pk_bf16_f32 v{248+c}, v{A+2*c}, v{A+1+2*c}')
            e.I(f'buffer_store_dwordx4 v[248:251], v{12+r}, s[12:15], 0 offen')
        e.I('v_mov_b32 v17, 0xbf317218')
        loads(0); loads(1); loads(2)
        reduce(0, 32)
        e.I('s_nop 1')
        reduce(1, 16)
        e.I('s_cmp_lg_u32 s3, 0')
        e.I('s_cbranch_scc1 L_k3_end')
        reduce(2, 0)
        e.label('L_k3_end')
    st.dump()
    e.label('L_k3_done')
    e.I('s_endpgm')
    txt = e.finalize()
    if loop:
        lines = txt.split('\n')
        idx = [n for n, l in enumerate(lines) if l.startswith(';@ITER')]
        segs = [lines[idx[k] + 1: idx[k + 1]] for k in range(LN_IT)]
        for k in range(1, LN_IT):
            if segs[k] != segs[0]:
                for a, b in zip(segs[0], segs[k]):
                    if a != b:
                        raise Exception(f'loop body mismatch iter {k}: {a} | {b}')
                raise Exception(f'loop body length mismatch iter {k} {len(segs[0])} {len(segs[k])}')
        body = list(segs[0])
        assert body[-1].strip() == 's_cbranch_scc1 L_k3_loop'
        body[-1] = '    s_cbranch_scc0 L_k3_loop'
        lines = lines[:idx[0]] + ['L_k3_loop:'] + body + lines[idx[LN_IT] + 1:]
        txt = '\n'.join(lines)
    return txt + kd(name, 512, 256)
```

```python
from asmlib import Em
from common import *

XSL = 16 * 1040
NXS = 3
XPART = NXS * XSL
SL = 32 * 384
NS = 6
NU = 18
K1_LDS = XPART + NS * SL
KVP = 264
AC = 64
CS = 128
FB = 144
NF = 20
XF = 36

def gen_k1(name='qkv_kernel', D=7, stamps=False, prefetch=True, twait=False, PF0=152, PFS=2, nodot=False, nocs=False, nodma=False, PRO=3, dgap=1, dn=2, LIT0=2, LIT1=7, DUM=1, nogram=False, nopatch=False, nobar=False, tlb=0, pfup=True, rot=0):
    e = Em()
    st = Stamps(e, stamps, 0)
    e.raw(head(name))
    e.I('s_cmp_ge_u32 s2, 256')
    e.I('s_cbranch_scc1 L_k1_done')
    st(0)
    e.I('s_load_dwordx4 s[4:7], s[0:1], 0')
    e.I('s_load_dwordx4 s[28:31], s[0:1], 64')
    e.I('s_load_dwordx2 s[56:57], s[0:1], 16')
    e.I('s_load_dwordx4 s[76:79], s[0:1], 32')
    e.I('s_load_dwordx2 s[80:81], s[0:1], 48')
    e.I('s_getpc_b64 s[52:53]')
    e.label('L_k1_pc')
    e.I('s_lshr_b32 s26, s2, 3')
    e.I('s_lshl_b32 s54, s26, 5')
    e.I('v_add_u32 v251, s54, v0')
    e.I('v_lshlrev_b32 v251, 7, v251')
    e.I('v_cmp_gt_u32 vcc, 32, v0')
    e.I('v_min_u32 v251, L_code_end-L_k1_pc-4, v251')
    e.I('s_and_saveexec_b64 s[58:59], vcc')
    e.I('s_cbranch_execz L_k1_nopf')
    e.I('global_load_dword v252, v251, s[52:53]')
    e.label('L_k1_nopf')
    e.I('s_mov_b64 exec, -1')
    e.I('s_mul_i32 s47, s26, 288')
    e.I('s_and_b32 s48, s2, 1')
    e.I('s_mul_i32 s48, s48, 9216')
    e.I('s_add_u32 s47, s47, s48')
    e.I('v_add_u32 v4, s47, v0')
    e.I('v_lshlrev_b32 v4, 7, v4')
    e.I(f'v_mov_b32 v6, {OOB}')
    e.I('v_add_u32 v7, 0x8000, v4')
    e.I('v_cndmask_b32 v7, v6, v7, vcc')
    e.I('s_mul_i32 s47, s26, 162')
    e.I('v_cmp_gt_u32 vcc, 162, v0')
    e.I('v_min_u32 v5, 161, v0')
    e.I('v_add_u32 v5, s47, v5')
    e.I('v_mul_u32_u24 v11, 58255, v5')
    e.I('v_lshrrev_b32 v11, 19, v11')
    e.I('v_mul_u32_u24 v8, 9, v11')
    e.I('v_sub_u32 v8, v5, v8')
    e.I('v_mul_u32_u24 v9, 11, v8')
    e.I('v_lshrrev_b32 v9, 5, v9')
    e.I('v_mul_u32_u24 v10, 3, v9')
    e.I('v_sub_u32 v8, v8, v10')
    e.I('v_mul_u32_u24 v11, 3456, v11')
    e.I('v_mul_u32_u24 v9, 1152, v9')
    e.I('v_lshl_add_u32 v11, v8, 7, v11')
    e.I('s_bfe_u32 s48, s2, 0x20001')
    e.I('s_mul_i32 s48, s48, 288')
    e.I('s_and_b32 s48, s48, 0xff80')
    e.I('v_add3_u32 v5, v11, v9, s48')
    e.I('v_cndmask_b32 v5, v6, v5, vcc')
    e.I('v_lshrrev_b32 v1, 6, v0')
    e.I('v_readfirstlane_b32 s3, v1')
    e.I('v_and_b32 v1, 63, v0')
    e.I('s_waitcnt lgkmcnt(0)')
    srd(e, 8, 4, 5, ACT_BYTES)
    srd(e, 12, 6, 7, 576 * 1728 * 2)
    e.V('buffer_load_dword v252, v4, s[8:11], 0 offen', 'pf')
    e.V('buffer_load_dword v252, v5, s[12:15], 0 offen', 'pf')
    e.V('buffer_load_dword v252, v7, s[8:11], 0 offen', 'pf')
    if twait:
        e.I('s_waitcnt vmcnt(0)')
        st(6)
    e.I('s_and_b32 s24, s2, 1')
    e.I('s_lshl_b32 s24, s24, 3')
    e.I('s_and_b32 s27, s26, 7')
    e.I('s_add_u32 s24, s24, s27')
    e.I('s_bfe_u32 s25, s2, 0x20001')
    e.I('s_lshl_b32 s25, s25, 2')
    e.I('s_lshr_b32 s26, s26, 3')
    e.I('s_add_u32 s25, s25, s26')
    e.I('s_lshl_b32 s32, s24, 7')
    e.I('s_lshl_b32 s33, s3, 5')
    e.I('s_add_u32 s32, s32, s33')
    e.I('v_and_b32 v2, 31, v1')
    e.I('v_lshrrev_b32 v3, 5, v1')
    e.I('v_lshrrev_b32 v8, 3, v1')
    e.I('v_bfe_u32 v9, v1, 4, 1')
    e.I('v_lshlrev_b32 v9, 2, v9')
    e.I('v_and_b32 v10, 7, v1')
    e.I('v_xor_b32 v10, v10, v9')
    e.I('v_mul_u32_u24 v8, 1152, v8')
    e.I('v_lshl_add_u32 v4, v10, 4, v8')
    for i in range(1, 4):
        e.I(f'v_add_u32 v{4+i}, {i*8*1152}, v4')
    e.I('s_mul_i32 s44, s32, 1152')
    for i in range(3):
        e.I(f'v_add_u32 v12, {64*i}, v1')
        e.I('v_mul_u32_u24 v13, 2731, v12')
        e.I('v_lshrrev_b32 v13, 16, v13')
        e.I('v_mul_u32_u24 v14, 24, v13')
        e.I('v_sub_u32 v14, v12, v14')
        e.I('v_bfe_u32 v15, v13, 1, 1')
        e.I('v_lshlrev_b32 v15, 2, v15')
        e.I('v_xor_b32 v14, v14, v15')
        e.I('v_lshrrev_b32 v15, 3, v14')
        e.I('v_and_b32 v14, 7, v14')
        e.I('v_mul_u32_u24 v15, 1152, v15')
        e.I('v_lshl_add_u32 v15, v14, 4, v15')
        e.I('v_mul_u32_u24 v13, 3456, v13')
        e.I(f'v_add_u32 v{8+i}, v13, v15')
    e.I('s_mul_i32 s34, s25, 72')
    e.I('s_and_b32 s39, s34, 63')
    e.I('s_and_b32 s34, s34, 0xffc0')
    e.I('s_mul_i32 s35, s3, %d' % (8 * 3456))
    e.I('s_add_u32 s35, s35, s34')
    e.I('s_mul_i32 s36, s3, %d' % (4 * 1040))
    e.I('s_mul_i32 s38, s3, 3072')
    e.I(f's_add_u32 s38, s38, {XPART}')
    e.I('s_mov_b32 s62, s36')
    e.I('s_mov_b32 s63, s38')
    e.I('s_mov_b32 s46, 0')
    def dma_ops(u):
        ops = []
        if u % 2 == 0:
            for i in range(4):
                ops.append(('I', f's_add_u32 m0, s62, {i*1040}'))
                ops.append(('V', f'buffer_load_dwordx4 v{4+i}, s[8:11], s44 offen lds', ('d', u)))
            ops.append(('I', 's_add_u32 s44, s44, 128'))
        for i in range(3):
            ops.append(('I', f's_add_u32 m0, s63, {(u % 2) * SL + i*1024}'))
            ops.append(('V', f'buffer_load_dwordx4 v{8+i}, s[12:15], s35 offen lds', ('d', u)))
        ops.append(('I', f's_add_u32 s35, s35, {32*3456}'))
        if u % 2 == 1:
            ops.append(('G', [f's_add_u32 s62, s62, {XSL}', f's_add_u32 s63, s63, {2*SL}', 's_add_u32 s46, s46, 1',
                              's_cmp_eq_u32 s46, 3', 's_cselect_b32 s62, s36, s62', 's_cselect_b32 s63, s38, s63', 's_cselect_b32 s46, 0, s46']))
        return ops
    def emit(op):
        if op[0] == 'I':
            e.I(op[1])
        elif op[0] == 'G':
            for t_ in op[1]:
                e.I(t_)
        else:
            e.V(op[1], op[2])
    for u in range(PRO):
        for op in dma_ops(u):
            emit(op)
    if tlb:
        e.I('s_load_dwordx2 s[58:59], s[0:1], 56')
        e.I(f'v_lshlrev_b32 v61, {tlb}, v0')
        e.I(f'v_min_u32 v61, {WS_STATS + STATS_BYTES - 4}, v61')
        e.I('s_lshr_b32 s45, s2, 3')
        e.I('s_cmp_lg_u32 s45, 1')
        e.I('s_cbranch_scc1 L_k1_notlb')
        e.V('global_load_dword v62, v61, s[30:31]', 'pf')
        e.I(f'v_min_u32 v61, {ACT_BYTES - 4}, v61')
        e.I('s_waitcnt lgkmcnt(0)')
        e.V('global_load_dword v63, v61, s[58:59]', 'pf')
        e.label('L_k1_notlb')
        e.I('s_waitcnt lgkmcnt(0)')
    srd_off(e, 16, 30, 31, WS_PQ, PQ_BYTES)
    srd_off(e, 20, 30, 31, WS_KV, 32 * KV_HEAD_BYTES)
    srd(e, 40, 28, 29, 256)
    e.I('s_lshl_b32 s37, s25, 2')
    e.I('v_mov_b32 v253, 1')
    e.I(f'v_mov_b32 v254, {OOB}')
    e.I('v_cmp_eq_u32 vcc, 0, v1')
    e.I('v_cndmask_b32 v254, v254, 0, vcc')
    e.I('s_cmp_lg_u32 s3, 3')
    e.I('s_cbranch_scc1 L_k1_noclaim')
    e.V('buffer_atomic_add v253, v254, s[40:43], s37 offen sc0', 'pf')
    e.label('L_k1_noclaim')
    st(1)
    e.I('v_and_b32 v12, 3, v1')
    e.I('v_bfe_u32 v13, v1, 2, 2')
    e.I('v_bfe_u32 v14, v1, 4, 1')
    e.I('v_lshl_add_u32 v15, v3, 3, v13')
    e.I('v_mul_u32_u24 v15, 384, v15')
    e.I(f'v_add_u32 v15, {XPART}, v15')
    e.I('v_lshl_add_u32 v26, v14, 2, v12')
    e.I('v_bfe_u32 v29, v13, 1, 1')
    e.I('v_lshlrev_b32 v29, 6, v29')
    e.I('s_lshl_b32 s45, s3, 3')
    for T in range(5):
        if T < 4:
            e.I(f'v_add_u32 v27, {8*T}, v26')
        else:
            e.I('v_add_u32 v27, s45, v26')
        e.I('v_min_u32 v27, 28, v27')
        e.I('v_mul_u32_u24 v28, 13, v27')
        e.I('v_lshrrev_b32 v28, 7, v28')
        e.I('v_mul_u32_u24 v30, 10, v28')
        e.I('v_sub_u32 v27, v27, v30')
        e.I('v_min_u32 v27, 8, v27')
        e.I('v_lshlrev_b32 v27, 3, v27')
        e.I('v_lshl_add_u32 v27, v28, 7, v27')
        e.I('v_add_u32 v27, s39, v27')
        e.I('v_xor_b32 v27, v27, v29')
        e.I(f'v_add_u32 v{16+T}, v27, v15')
    e.I('v_lshrrev_b32 v30, 3, v2')
    e.I('v_mul_u32_u24 v30, 1040, v30')
    e.I('v_and_b32 v31, 7, v2')
    e.I('v_lshl_add_u32 v30, v31, 7, v30')
    e.I('v_lshl_add_u32 v30, v3, 4, v30')
    e.I('v_add_u32 v30, s36, v30')
    e.I('v_bfe_u32 v31, v2, 1, 1')
    e.I('v_lshl_add_u32 v26, v31, 6, v30')
    e.I('v_xor_b32 v31, 1, v31')
    e.I('v_lshl_add_u32 v27, v31, 6, v30')
    if prefetch:
        e.I(f's_add_u32 s82, s2, {rot}')
        e.I('s_and_b32 s82, s82, 7')
        e.I('s_lshr_b32 s83, s2, 3')
        e.I('s_lshl_b32 s83, s83, 2')
        e.I('s_add_u32 s83, s83, s3')
        e.I('s_mul_i32 s84, s83, 41')
        e.I('s_mul_i32 s85, s82, 1152')
        e.I('v_min_u32 v248, 40, v1')
        e.I('v_add_u32 v248, s84, v248')
        e.I('v_min_u32 v248, 5183, v248')
        e.I('v_mul_u32_u24 v249, 58255, v248')
        e.I('v_lshrrev_b32 v249, 19, v249')
        e.I('v_mul_u32_u24 v250, 9, v249')
        e.I('v_sub_u32 v250, v248, v250')
        e.I('v_mul_u32_u24 v249, 9216, v249')
        e.I('v_lshl_add_u32 v249, v250, 7, v249')
        e.I('v_add_u32 v249, s85, v249')
        e.I('v_lshlrev_b32 v248, 7, v248')
    e.I('v_mov_b32 v58, 0')
    pf_ops = {PF0 - 1: 'buffer_load_dword v59, v58, s[40:43], s37 offen offset:64 sc0 sc1'}
    if prefetch:
        pf_ops.update({PF0: 'global_load_dword v244, v248, s[56:57]', PF0 + PFS: 'global_load_dword v245, v249, s[76:77]',
              PF0 + 2 * PFS: 'global_load_dword v246, v249, s[78:79]' if pfup else 'global_load_dword v246, v248, s[56:57]'})
    for i in range(4):
        e.I(f'v_mov_b32 v{32+i}, 0x3f803f80')
    e.I('v_cmp_le_u32 s[60:61], 24, v2')
    NM = 36 * 5
    GR = 224
    e.I('s_mov_b32 s47, 0')
    def reads(i):
        s, T = i // 5, i % 5
        u, ks = s // 2, s % 2
        if T == 0 and s % 4 == 0 and s > 0:
            e.I('s_add_u32 s47, s47, 1')
            e.I('s_cmp_eq_u32 s47, 3')
            e.I(f's_cselect_b32 s48, {-4*SL}, {2*SL}' if False else f's_mov_b32 s48, {2*SL}')
            e.I(f's_mov_b32 s49, {XSL}')
            e.I(f's_cselect_b32 s48, {(-4*SL) & 0xffffffff:#x}, s48')
            e.I(f's_cselect_b32 s49, {(-2*XSL) & 0xffffffff:#x}, s49')
            e.I('s_cselect_b32 s47, 0, s47')
            for t in range(5):
                e.I(f'v_add_u32 v{16+t}, s48, v{16+t}')
            e.I('v_add_u32 v26, s49, v26')
            e.I('v_add_u32 v27, s49, v27')
        if T == 0:
            x = XF + 4 * (s % 4)
            e.L(f'ds_read_b128 v[{x}:{x+3}], v{26 + (s % 4) // 2} offset:{(s % 2)*32}', ('f', i))
        f = FB + 4 * (i % NF)
        o = (u % 2) * SL + ks * 16 * 384
        e.L(f'ds_read_b64_tr_b16 v[{f}:{f+1}], v{16+T} offset:{o}', ('f', i))
        e.L(f'ds_read_b64_tr_b16 v[{f+2}:{f+3}], v{16+T} offset:{o+4*384}', ('f', i))
    dq = []
    def barrier(u):
        while dq and any(op[0] == 'V' and op[2][1] <= u + 1 for op in dq):
            emit(dq.pop(0))
        e.wait_vm(('d', u))
        if not nobar: e.I('s_barrier')
        if u >= 2 and u + NS - 2 < NU + DUM:
            dq.extend(dma_ops(u + NS - 2))
    def zero_init():
        e.I('s_cmp_lg_u32 s3, 3')
        e.I('s_cbranch_scc1 L_k1_noinit')
        e.I('v_readfirstlane_b32 s45, v253')
        e.I('s_cmp_lg_u32 s45, 0')
        e.I('s_cbranch_scc1 L_k1_noinit')
        e.I('s_mul_i32 s45, s25, %d' % (2 * KV_HEAD_BYTES))
        e.I('v_lshlrev_b32 v255, 4, v1')
        e.I('v_cmp_gt_u32 vcc, 36, v1')
        e.I(f'v_mov_b32 v60, {OOB}')
        e.I('v_cndmask_b32 v60, v60, v255, vcc')
        for i in range(4):
            e.I(f'v_mov_b32 v{240+i}, 0')
        for i in range(4):
            e.I(f'buffer_store_dwordx4 v[240:243], v{255 if i < 3 else 60}, s[20:23], s45 offen offset:{1024*i} sc0 sc1')
        e.I('s_waitcnt vmcnt(0)')
        e.I('v_mov_b32 v253, 1')
        e.I('buffer_atomic_add v253, v254, s[40:43], s37 offen offset:64')
        e.label('L_k1_noinit')
    for r in list(range(AC, CS + 16)) + list(range(GR, GR + 16)):
        e.I(f'v_mov_b32 v{r}, 0')
    barrier(0)
    for u in range(PRO, NS):
        dq.extend(dma_ops(u))
    for i in range(D):
        reads(i)
    NMX = NM + 40
    IT0, NIT = LIT0, LIT1 - LIT0
    for i in range(NM):
        s, T = i // 5, i % 5
        if i % 20 == 0 and IT0 <= i // 20 <= LIT1:
            k = i // 20 - IT0
            if k == 0:
                zero_init()
                e.I(f's_mov_b32 s55, {NIT - 1}')
            else:
                e.I('s_sub_u32 s55, s55, 1')
                e.I('s_cbranch_scc1 L_k1_loop')
            e.raw(f';@K1ITER {k}')
        if i in pf_ops:
            e.V(pf_ops[i], ('pfl', i))
        j = i + D
        n = 0
        while dq and n < dn:
            op = dq.pop(0); emit(op); n += 1
        if j < NM:
            if j % 10 == 0:
                barrier(j // 10)
            reads(j)
        e.wait_lg(('f', i))
        x = XF + 4 * (s % 4)
        f = FB + 4 * (i % NF)
        if T < 4:
            acc = f'v[{AC+16*T}:{AC+16*T+15}]'
            e.I(f'v_mfma_f32_32x32x16_bf16 {acc}, v[{f}:{f+3}], v[{x}:{x+3}], {acc}')
        else:
            acc = f'v[{CS}:{CS+15}]'
            e.I(f'v_mfma_f32_32x32x16_bf16 {acc}, v[{f}:{f+3}], v[32:35], {acc}')
        if T == 1 and not nopatch:
            e.wait_lg(('f', i + 2))
            f3 = FB + 4 * ((i + 2) % NF)
            for c in range(4):
                e.I(f'v_cndmask_b32 v{f3+c}, v{f3+c}, v32, s[60:61]')
        if T == 2 and not nogram:
            acc = f'v[{GR}:{GR+15}]'
            e.I(f'v_mfma_f32_32x32x16_bf16 {acc}, v[{x}:{x+3}], v[{x}:{x+3}], {acc}')
    e.wait_vm(('d', NU + DUM - 1))
    st(2)
    e.I('v_and_b32 v36, 1, v2');  e.I('v_cmp_eq_u32 s[62:63], 1, v36')
    e.I('v_and_b32 v36, 2, v2');  e.I('v_cmp_eq_u32 s[50:51], 2, v36')
    e.I('v_and_b32 v36, 8, v2');  e.I('v_cmp_eq_u32 s[48:49], 8, v36')
    e.I('v_and_b32 v36, 16, v2'); e.I('v_cmp_eq_u32 s[46:47], 16, v36')
    for k_ in range(8):
        e.I(f'v_cndmask_b32 v{GR+2*k_}, v{GR+2*k_}, v{GR+2*k_+1}, s[62:63]')
    for k_ in range(4):
        e.I(f'v_cndmask_b32 v{GR+4*k_}, v{GR+4*k_}, v{GR+4*k_+2}, s[50:51]')
    for k_ in range(2):
        e.I(f'v_cndmask_b32 v{GR+8*k_}, v{GR+8*k_}, v{GR+8*k_+4}, s[48:49]')
    e.I(f'v_cndmask_b32 v40, v{GR}, v{GR+8}, s[46:47]')
    e.I('v_bfe_u32 v36, v2, 2, 1')
    e.I('v_cmp_eq_u32 vcc, v36, v3')
    e.I('v_cndmask_b32 v40, 0, v40, vcc')
    e.I('v_mov_b32 v41, v40')
    e.I('v_permlane32_swap_b32 v40, v41')
    e.I('v_add_f32 v40, v40, v41')
    e.I(f'v_mov_b32 v36, v{AC+48+12}')
    inv = 0x3ae38e39
    e.I(f'v_mul_f32 v36, {inv:#x}, v36')
    e.I(f'v_mul_f32 v40, {inv:#x}, v40')
    e.I('v_fma_f32 v40, -v36, v36, v40')
    e.I('v_max_f32 v40, 0, v40')
    e.I('v_add_f32 v40, 0x3727c5ac, v40')
    e.I('v_rsq_f32 v44, v40')
    e.I('v_mul_f32 v45, v36, v44')
    e.I('v_sub_f32 v45, 0, v45')
    CSL = 40960
    e.I('s_barrier')
    e.I('s_lshl_b32 s45, s3, 7')
    e.I('v_lshl_add_u32 v46, v3, 4, s45')
    e.I('v_cmp_eq_u32 vcc, 0, v2')
    e.I('s_and_saveexec_b64 s[58:59], vcc')
    for a in range(4):
        e.L(f'ds_write_b128 v46, v[{CS+4*a}:{CS+4*a+3}] offset:{CSL + 32*a}', 'w')
    e.I('s_mov_b64 exec, -1')
    e.I('v_lshlrev_b32 v46, 4, v3')
    e.I('s_waitcnt lgkmcnt(0)')
    e.lg_done = len(e.lg)
    e.I('s_barrier')
    groups_all = [(T, a) for T in range(4) for a in range(4) if (T, a) != (3, 3)]
    for gi, (T, a) in enumerate(groups_all):
        e.L(f'ds_read_b128 v[{FB+4*gi}:{FB+4*gi+3}], v46 offset:{CSL + 128*T + 32*a}', ('c', gi))
    def R(T, a, c):
        return AC + 16 * T + 4 * a + c
    for gi, (T, a) in enumerate(groups_all):
        e.wait_lg(('c', gi))
        for c in range(4):
            e.I(f'v_mul_f32 v{FB+4*gi+c}, v45, v{FB+4*gi+c}')
        for c in range(4):
            e.I(f'v_fma_f32 v{R(T,a,c)}, v{R(T,a,c)}, v44, v{FB+4*gi+c}')
    st(3)
    rs = [R(T, a, c) for (T, a) in groups_all[:10] for c in range(4)]
    ts = [FB + i for i in range(40)]
    for r, t in zip(rs, ts):
        e.I(f'v_min_f32 v{t}, 0, v{r}')
    for r, t in zip(rs, ts):
        e.I(f'v_mul_f32 v{t}, {LOG2E:#x}, v{t}')
    for r, t in zip(rs, ts):
        e.I(f'v_exp_f32 v{t}, v{t}')
    for r, t in zip(rs, ts):
        e.I(f'v_max_f32 v{r}, 0x358637bd, v{r}') if False else e.I(f'v_max_f32 v{r}, 0, v{r}')
    for r, t in zip(rs, ts):
        e.I(f'v_add_f32 v{t}, 0x358637bd, v{t}')
    for r, t in zip(rs, ts):
        e.I(f'v_add_f32 v{r}, v{r}, v{t}')
    def P(T, a):
        return 184 + (T * 4 + a) * 2
    for (T, a) in groups_all:
        e.I(f'v_cvt_pk_bf16_f32 v{P(T,a)}, v{R(T,a,0)}, v{R(T,a,1)}')
        e.I(f'v_cvt_pk_bf16_f32 v{P(T,a)+1}, v{R(T,a,2)}, v{R(T,a,3)}')
    e.I('v_add_u32 v30, s33, v2')
    e.I(f'v_mul_u32_u24 v30, {KVP}, v30')
    def pos(col):
        return (col // 18) * 64 + (col % 18) * 2
    DUMMY = 60
    groups = [((1, 1), 0, 0), ((1, 2), 0, 2), ((1, 3), 0, 4), ((2, 0), 0, 6), ((2, 1), 0, 8),
              ((2, 2), 128, 0), ((2, 3), 128, 2), ((3, 0), 128, 4), ((3, 1), 128, 6), ((3, 2), 128, 8)]
    e.I('v_lshl_add_u32 v31, v3, 3, v30')
    k = 0
    for (T, a), part, ch0 in groups:
        for pr in range(2):
            x0 = part + pos(4 * ch0 + 2 * pr)
            x1 = part + pos(4 * (ch0 + 1) + 2 * pr) if ch0 < 8 else DUMMY
            d = x1 - x0
            if d == 8:
                e.L(f'ds_write_b32 v31, v{P(T,a)+pr} offset:{x0}', 'w')
            else:
                t = 47 + (k % 4); k += 1
                e.I(f'v_mov_b32 v{t}, {d}')
                e.I(f'v_mad_i32_i24 v{t}, v3, v{t}, v30')
                e.L(f'ds_write_b32 v{t}, v{P(T,a)+pr} offset:{x0}', 'w')
    e.I('v_lshl_add_u32 v51, v3, 6, v30')
    e.I('v_mov_b32 v52, 0x3f80')
    e.L('ds_write_b32 v51, v52 offset:164', 'w')
    e.I('s_mul_i32 s45, s25, 72')
    e.I('v_add_u32 v53, s32, v2')
    e.I(f'v_mul_u32_u24 v53, {PQ_PITCH}, v53')
    e.I('v_lshl_add_u32 v54, v3, 3, v53')
    e.I('v_add_u32 v55, s45, v54')
    e.I(f'v_mov_b32 v57, {OOB}')
    e.I('v_cmp_eq_u32 s[48:49], 0, v3')
    e.I('v_cndmask_b32 v56, v57, v55, s[48:49]')
    e.I('s_waitcnt lgkmcnt(0)')
    e.lg_done = len(e.lg)
    e.I('s_barrier')
    st(4)
    if stamps:
        st(5)
    e.I('s_cmp_ge_u32 s3, 2')
    e.I('s_cbranch_scc1 L_k1_stores')
    e.I('v_lshl_add_u32 v15, v3, 3, v13')
    e.I(f'v_mul_u32_u24 v15, {KVP}, v15')
    e.I('v_lshl_add_u32 v15, v14, 5, v15')
    e.I('v_lshl_add_u32 v15, v12, 3, v15')
    e.I('s_lshl_b32 s50, s3, 6')
    e.I('v_add_u32 v15, s50, v15')
    KA = 128
    for ks in range(8):
        r = 64 + 8 * ks
        e.L(f'ds_read_b64_tr_b16 v[{r}:{r+1}], v15 offset:{ks*16*KVP + 128}', ('k', ks))
        e.L(f'ds_read_b64_tr_b16 v[{r+2}:{r+3}], v15 offset:{ks*16*KVP + 128 + 4*KVP}', ('k', ks))
        e.L(f'ds_read_b64_tr_b16 v[{r+4}:{r+5}], v15 offset:{ks*16*KVP}', ('k', ks))
        e.L(f'ds_read_b64_tr_b16 v[{r+6}:{r+7}], v15 offset:{ks*16*KVP + 4*KVP}', ('k', ks))
        if ks >= 2:
            k2 = ks - 2
            e.wait_lg(('k', k2))
            r2 = 64 + 8 * k2
            e.I(f'v_mfma_f32_32x32x16_bf16 v[{KA}:{KA+15}], v[{r2}:{r2+3}], v[{r2+4}:{r2+7}], {"v[%d:%d]" % (KA, KA+15) if k2 else "0"}')
    e.I('s_lshl_b32 s50, s25, 1')
    e.I('s_add_u32 s50, s50, s3')
    e.I('s_mul_i32 s50, s50, %d' % KV_HEAD_BYTES)
    e.I('v_mul_u32_u24 v18, 384, v3')
    e.I('v_lshl_add_u32 v18, v2, 2, v18')
    e.I('v_cmp_gt_u32 vcc, 18, v2')
    e.I('v_cndmask_b32 v18, v57, v18, vcc')
    e.I('v_cndmask_b32 v19, v57, v18, s[48:49]')
    for k2 in (6, 7):
        e.wait_lg(('k', k2))
        r2 = 64 + 8 * k2
        e.I(f'v_mfma_f32_32x32x16_bf16 v[{KA}:{KA+15}], v[{r2}:{r2+3}], v[{r2+4}:{r2+7}], v[{KA}:{KA+15}]')
    e.I('s_waitcnt vmcnt(%d)' % (3 if prefetch else 0))
    e.label('L_k1_poll')
    e.I('v_readfirstlane_b32 s51, v59')
    e.I('s_cmp_lg_u32 s51, 0')
    e.I('s_cbranch_scc1 L_k1_go')
    e.I('s_sleep 2')
    e.I('buffer_load_dword v59, v58, s[40:43], s37 offen offset:64 sc0 sc1')
    e.I('s_waitcnt vmcnt(0)')
    e.I('s_branch L_k1_poll')
    e.label('L_k1_go')
    st(5)
    e.I('s_nop 7')
    e.I('s_nop 3')
    for a in range(2):
        for c in range(4):
            e.I(f'buffer_atomic_add_f32 v{KA+4*a+c}, v18, s[20:23], s50 offen offset:{(8*a+c)*96}')
    for c in range(3):
        e.I(f'buffer_atomic_add_f32 v{KA+8+c}, v19, s[20:23], s50 offen offset:{(16+c)*96}')
    e.label('L_k1_stores')
    for a in range(4):
        e.I(f'buffer_store_dwordx2 v[{P(0,a)}:{P(0,a)+1}], v55, s[16:19], 0 offen offset:{16*a}')
    e.I(f'buffer_store_dwordx2 v[{P(1,0)}:{P(1,0)+1}], v56, s[16:19], 0 offen offset:64')
    e.I('s_cmp_lg_u32 s25, 15')
    e.I('s_cbranch_scc1 L_k1_fin')
    e.I('v_mov_b32 v60, 0')
    e.I('v_mov_b32 v61, 0')
    e.I('buffer_store_dwordx2 v[60:61], v54, s[16:19], 0 offen offset:1152')
    e.label('L_k1_fin')
    st.dump()
    e.label('L_k1_done')
    e.I('s_endpgm')
    txt = e.finalize()
    lines = txt.split('\n')
    idx = [n for n, l in enumerate(lines) if l.startswith(';@K1ITER')]
    segs = [lines[idx[k] + 1: idx[k + 1]] for k in range(len(idx) - 1)]
    for k in range(1, len(segs)):
        if segs[k] != segs[0]:
            for a, b in zip(segs[0], segs[k]):
                if a != b:
                    raise Exception(f'K1 loop body mismatch iter {k}: {a} | {b}')
            raise Exception('K1 loop body length mismatch')
    body = list(segs[0])
    assert body[-1].strip() == 's_cbranch_scc1 L_k1_loop'
    body[-1] = '    s_cbranch_scc0 L_k1_loop'
    lines = lines[:idx[0]] + ['L_k1_loop:'] + body + lines[idx[-1] + 1:]
    return '\n'.join(lines) + kd(name, 256, 256)

for g in range(192):
    assert (g * 2731) >> 16 == g // 24, g
for c in range(29):
    assert (c * 13) >> 7 == c // 10, c
```

```python
from asmlib import Em
from common import *

PQ_LDS = 64 * PQ_PITCH
WO_LDS = PQ_LDS
K2_LDS = PQ_LDS + 576 * 144 + 1024

def gen_k2(name='attn_kernel', stamps=False, pfup=False, rot=0):
    e = Em()
    st = Stamps(e, stamps, 1)
    e.raw(head(name))
    e.I('s_cmp_ge_u32 s2, 256')
    e.I('s_cbranch_scc1 L_k2_done')
    st(0)
    e.I('s_load_dwordx2 s[4:5], s[0:1], 0')
    e.I('s_load_dwordx2 s[6:7], s[0:1], 16')
    e.I('s_load_dwordx2 s[30:31], s[0:1], 72')
    e.I('s_load_dwordx4 s[84:87], s[0:1], 40')
    e.I('v_lshrrev_b32 v1, 6, v0')
    e.I('v_readfirstlane_b32 s3, v1')
    e.I('v_and_b32 v1, 63, v0')
    e.I('s_and_b32 s24, s2, 7')
    e.I('s_lshl_b32 s24, s24, 2')
    e.I('s_lshr_b32 s25, s2, 3')
    e.I('s_and_b32 s26, s25, 3')
    e.I('s_add_u32 s24, s24, s26')
    e.I('s_lshr_b32 s25, s25, 2')
    e.I('v_and_b32 v2, 15, v1')
    e.I('v_lshrrev_b32 v3, 4, v1')
    e.I(f'v_mov_b32 v6, {OOB}')
    e.I('v_min_u32 v5, 2, v3')
    e.I('v_lshlrev_b32 v5, 5, v5')
    e.I('s_lshl_b32 s28, s3, 13')
    e.I(f's_add_u32 s28, s28, {WO_LDS}')
    e.I('v_add_u32 v5, s28, v5')
    e.I('v_mul_u32_u24 v4, 96, v2')
    e.I('v_add_u32 v4, v4, v5')
    e.I('v_cmp_gt_u32 s[60:61], 3, v3')
    e.I('v_and_b32 v8, 3, v2')
    e.I('v_cmp_eq_u32 s[44:45], 2, v8')
    e.I('v_and_b32 v7, 1, v2')
    e.I('v_cndmask_b32 v7, v7, 2, s[44:45]')
    e.I('v_mul_u32_u24 v7, 96, v7')
    e.I('v_add3_u32 v7, v7, v5, 0')
    e.I('v_add_u32 v7, 1536, v7')
    e.I('v_cmp_gt_u32 s[46:47], 2, v2')
    e.I('s_or_b64 s[44:45], s[44:45], s[46:47]')
    e.I('s_and_b64 s[62:63], s[44:45], s[60:61]')
    e.I('s_mul_i32 s27, s3, %d' % (4 * KV_HEAD_BYTES))
    e.I('v_lshlrev_b32 v8, 4, v1')
    e.I('v_lshlrev_b32 v9, 4, v0')
    e.I('s_mul_i32 s29, s24, %d' % PQ_LDS)
    e.I('s_lshl_b32 s33, s3, 10')
    e.I('v_mul_u32_u24 v10, 57, v1')
    e.I('v_lshrrev_b32 v10, 9, v10')
    e.I('v_mul_u32_u24 v11, 9, v10')
    e.I('v_sub_u32 v11, v1, v11')
    e.I('v_mul_u32_u24 v10, 1152, v10')
    e.I('v_lshl_add_u32 v10, v11, 4, v10')
    e.I('s_mul_i32 s34, s25, 144')
    e.I('s_mul_i32 s35, s3, %d' % (6 * 1152))
    e.I('s_add_u32 s35, s35, s34')
    e.I('v_add_u32 v10, s35, v10')
    e.I('s_mul_i32 s48, s3, 864')
    e.I('s_lshr_b32 s56, s2, 3')
    e.I('s_mul_i32 s57, s56, 73')
    e.I('s_and_b32 s58, s2, 7')
    e.I('s_mul_i32 s58, s58, 2336')
    e.I('s_add_u32 s57, s57, s58')
    e.I('v_add_u32 v24, s57, v0')
    e.I('v_lshlrev_b32 v24, 7, v24')
    e.I('v_cmp_gt_u32 vcc, 73, v0')
    e.I('v_cndmask_b32 v24, v6, v24, vcc')
    e.I('s_mul_i32 s57, s56, 15')
    e.I('v_subrev_u32 v25, 128, v0')
    e.I('v_cmp_gt_u32 vcc, 15, v25')
    e.I('v_add_u32 v25, s57, v25')
    e.I('v_lshlrev_b32 v25, 7, v25')
    e.I('v_cndmask_b32 v25, v6, v25, vcc')
    e.I('s_waitcnt lgkmcnt(0)')
    srd_off(e, 20, 30, 31, WS_KV, 32 * KV_HEAD_BYTES)
    srd_off(e, 16, 30, 31, WS_PQ, PQ_BYTES)
    e.V('buffer_load_dword v26, v24, s[16:19], 0 offen', 'pf')
    e.V('buffer_load_dword v27, v25, s[20:23], 0 offen', 'pf')
    KVR = 64
    e.I('s_mov_b32 m0, s28')
    for j in range(8):
        e.V(f'buffer_load_dwordx4 v8, s[20:23], s27 offen offset:{1024*(j%4)} lds', ('kv', j))
        if j == 3:
            e.I('s_add_u32 m0, m0, 0x1000')
            e.I('s_add_u32 s27, s27, 0x1000')
    e.I('s_mov_b32 m0, s33')
    for j in range(10):
        if j == 9:
            e.I('s_cmp_lg_u32 s3, 0')
            e.I('s_cbranch_scc1 L_k2_skip_pq')
        e.V('buffer_load_dwordx4 v9, s[16:19], s29 offen lds', ('pq', j) if j < 9 else 'pf')
        if j < 9:
            e.I('s_add_u32 m0, m0, 0x2000')
            e.I('s_add_u32 s29, s29, 0x2000')
    e.label('L_k2_skip_pq')
    e.wait_vm(('kv', 7))
    for hh in range(4):
        for tl, vo in ((0, 4), (1, 7)):
            r = KVR + (hh * 2 + tl) * 8
            o = hh * KV_HEAD_BYTES - 8 * hh
            if hh % 2 == 0:
                e.L(f'ds_read_b128 v[{r}:{r+3}], v{vo} offset:{o}', ('kvr', hh))
                e.L(f'ds_read_b128 v[{r+4}:{r+7}], v{vo} offset:{o+16}', ('kvr', hh))
            else:
                for c in range(4):
                    e.L(f'ds_read_b64 v[{r+2*c}:{r+2*c+1}], v{vo} offset:{o+8*c}', ('kvr', hh))
    e.I('s_waitcnt lgkmcnt(0)')
    e.lg_done = len(e.lg)
    st(1)
    e.I(f'v_mul_u32_u24 v14, {PQ_PITCH}, v2')
    e.I('s_mul_i32 s57, s3, 144')
    e.I('v_add_u32 v14, s57, v14')
    e.I('v_lshl_add_u32 v15, v3, 3, v14')
    e.I('v_min_u32 v16, 2, v3')
    e.I('v_lshl_add_u32 v14, v16, 4, v14')
    e.I('v_cmp_eq_u32 s[58:59], 0, v3')
    KF = 128
    for f in range(8):
        r = KVR + f * 8
        for c in range(4):
            e.I(f'v_cvt_pk_bf16_f32 v{KF+4*f+c}, v{r+2*c}, v{r+2*c+1}')
        for c in range(4):
            e.I(f'v_cndmask_b32 v{KF+4*f+c}, 0, v{KF+4*f+c}, s[{60 if f % 2 == 0 else 62}:{61 if f % 2 == 0 else 63}]')
    st(2)
    e.I('s_waitcnt vmcnt(0)')
    e.I('s_barrier')
    st(3)
    PB = 64
    ACC = 160
    for mt in range(4):
        mo = mt * 16 * PQ_PITCH
        for hh in range(4):
            r = PB + (mt * 4 + hh) * 4
            e.L(f'ds_read_b128 v[{r}:{r+3}], v14 offset:{mo + 32*hh}', ('b', mt, hh))
    srd(e, 12, 6, 7, 576 * 576 * 2)
    srd(e, 8, 4, 5, ACT_BYTES)
    e.I(f's_add_u32 m0, s48, {WO_LDS}')
    e.I('s_mov_b32 s49, 0')
    e.I('s_mov_b32 s50, -1')
    e.I('s_mov_b32 s51, 0x3fffff')
    e.I('s_mov_b64 exec, s[50:51]')
    for j in range(12):
        e.V('buffer_load_dwordx4 v10, s[12:15], s49 offen lds', ('wo', j))
        if j < 11:
            e.I('s_add_u32 m0, m0, 6912')
            e.I(f's_add_u32 s49, s49, {48*1152}')
    e.I('s_mov_b64 exec, -1')
    e.I('s_and_b32 s52, s3, 3')
    e.I('s_lshr_b32 s53, s3, 2')
    e.I('s_lshl_b32 s35, s24, 6')
    e.I('s_lshl_b32 s54, s52, 4')
    e.I('s_add_u32 s35, s35, s54')
    e.I('v_add_u32 v12, s35, v2')
    e.I('v_mul_u32_u24 v13, 1152, v12')
    e.I('v_lshl_add_u32 v13, v3, 3, v13')
    e.I('s_mul_i32 s55, s53, 96')
    e.I('s_add_u32 s56, s55, s34')
    e.I('v_add_u32 v13, s56, v13')
    XR = 40
    for j in range(3):
        e.V(f'buffer_load_dwordx2 v[{XR+2*j}:{XR+2*j+1}], v13, s[8:11], 0 offen offset:{32*j}', ('x', j))
    e.I('s_lshr_b32 s82, s2, 3')
    e.I('s_lshl_b32 s82, s82, 3')
    e.I('s_add_u32 s82, s82, s3')
    e.I('s_mul_i32 s82, s82, 21')
    e.I(f's_add_u32 s83, s2, {rot}')
    e.I('s_and_b32 s83, s83, 7')
    e.I('s_mul_i32 s83, s83, 5184')
    e.I('v_min_u32 v46, 20, v1')
    e.I('v_add_u32 v46, s82, v46')
    e.I('v_min_u32 v46, 5183, v46')
    if pfup:
        e.I('v_mul_u32_u24 v48, 58255, v46')
        e.I('v_lshrrev_b32 v48, 19, v48')
        e.I('v_mul_u32_u24 v49, 9, v48')
        e.I('v_sub_u32 v49, v46, v49')
        e.I('v_mul_u32_u24 v48, 9216, v48')
        e.I('v_lshl_add_u32 v48, v49, 7, v48')
        e.I('s_and_b32 s88, s2, 7')
        e.I('s_mul_i32 s88, s88, 1152')
        e.I('v_add_u32 v48, s88, v48')
        e.V('global_load_dword v50, v48, s[84:85]', ('pfl', 1))
    e.I('v_add_u32 v46, s83, v46')
    e.I('v_lshlrev_b32 v46, 7, v46')
    e.V('global_load_dword v47, v46, s[86:87]', ('pfl', 0))
    srd_off(e, 36, 30, 31, WS_H, ACT_BYTES)
    srd_off(e, 40, 30, 31, WS_STATS, STATS_BYTES)
    for half in range(2):
        for idx in range(8 * half, 8 * half + 8):
            mt, hh = idx // 4, idx % 4
            r = PB + idx * 4
            acc = ACC + (idx % 8) * 8
            e.wait_lg(('b', mt, hh))
            e.I(f'v_mfma_f32_16x16x32_bf16 v[{acc}:{acc+3}], v[{KF+8*hh}:{KF+8*hh+3}], v[{r}:{r+3}], 0')
            e.I(f'v_mfma_f32_16x16x32_bf16 v[{acc+4}:{acc+7}], v[{KF+8*hh+4}:{KF+8*hh+7}], v[{r}:{r+3}], 0')
        accs = [ACC + k * 8 for k in range(8)]
        for a in accs:
            e.I(f'v_add_f32 v{a+6}, 0x358637bd, v{a+6}')
        for a in accs:
            e.I(f'v_rcp_f32 v{a+6}, v{a+6}')
        for c in range(6):
            for a in accs:
                e.I(f'v_mul_f32 v{a+c}, v{a+c}, v{a+6}')
        for a in accs:
            e.I(f'v_cvt_pk_bf16_f32 v{a}, v{a}, v{a+1}')
            e.I(f'v_cvt_pk_bf16_f32 v{a+1}, v{a+2}, v{a+3}')
            e.I(f'v_cvt_pk_bf16_f32 v{a+2}, v{a+4}, v{a+5}')
        for mt in (2 * half, 2 * half + 1):
            if mt > 0:
                e.I(f'v_add_u32 v{20+mt}, {mt*16*PQ_PITCH}, v15')
        for k, a in enumerate(accs):
            mt, hh = 2 * half + k // 4, k % 4
            wb = 15 if mt == 0 else 20 + mt
            if hh % 2 == 0:
                e.L(f'ds_write_b64 v{wb}, v[{a}:{a+1}] offset:{36*hh}', 'w')
            else:
                e.L(f'ds_write2_b32 v{wb}, v{a}, v{a+1} offset0:{9*hh} offset1:{9*hh+1}', 'w')
        e.I('s_mov_b64 exec, s[58:59]')
        for k, a in enumerate(accs):
            mt, hh = 2 * half + k // 4, k % 4
            e.L(f'ds_write_b32 v15, v{a+2} offset:{mt*16*PQ_PITCH + 36*hh + 32}', 'w')
        e.I('s_mov_b64 exec, -1')
    st(4)
    e.I('s_mul_i32 s57, s52, %d' % (16 * PQ_PITCH))
    e.I(f'v_mul_u32_u24 v14, {PQ_PITCH}, v2')
    e.I('v_lshl_add_u32 v14, v3, 4, v14')
    e.I('v_add_u32 v14, s57, v14')
    e.I('v_and_b32 v18, 3, v1')
    e.I('v_bfe_u32 v19, v1, 2, 2')
    e.I('v_lshl_add_u32 v19, v3, 3, v19')
    e.I('v_mul_u32_u24 v19, 144, v19')
    e.I('v_lshl_add_u32 v19, v18, 3, v19')
    e.I(f's_add_u32 s57, s55, {WO_LDS}')
    e.I('v_add_u32 v19, s57, v19')
    e.I(f'v_add_u32 v18, {9*32*144}, v19')
    e.I('s_waitcnt vmcnt(%d) lgkmcnt(0)' % (5 if pfup else 4))
    e.lg_done = len(e.lg)
    e.I('s_barrier')
    st(5)
    NB = 3
    def rd(s):
        bb = 64 + (s % NB) * 16
        e.L(f'ds_read_b128 v[{bb}:{bb+3}], v14 offset:{64*s}', ('g', s))
        base = 19 if s < 9 else 18
        so = (s % 9) * 32 * 144
        for T in range(3):
            r = bb + 4 + 4 * T
            e.L(f'ds_read_b64_tr_b16 v[{r}:{r+1}], v{base} offset:{so + 32*T}', ('g', s))
            e.L(f'ds_read_b64_tr_b16 v[{r+2}:{r+3}], v{base} offset:{so + 32*T + 4*144}', ('g', s))
    rd(0); rd(1)
    OA = 128
    for s in range(18):
        if s + 2 < 18:
            rd(s + 2)
        e.wait_lg(('g', s))
        bb = 64 + (s % NB) * 16
        for T in range(3):
            c = f'v[{OA+4*T}:{OA+3+4*T}]' if s > 0 else '0'
            e.I(f'v_mfma_f32_16x16x32_bf16 v[{OA+4*T}:{OA+3+4*T}], v[{bb+4+4*T}:{bb+7+4*T}], v[{bb}:{bb+3}], {c}')
    st(6)
    e.I('v_lshrrev_b32 v20, 5, v12')
    e.I('v_mul_u32_u24 v20, %d, v20' % (36 * 1024))
    e.I('v_and_b32 v21, 31, v12')
    e.I('v_lshl_add_u32 v20, v21, 4, v20')
    e.I('s_mul_i32 s57, s25, 72')
    e.I('s_mul_i32 s56, s53, 48')
    e.I('s_add_u32 s57, s57, s56')
    e.I('v_lshl_add_u32 v21, v3, 2, s57')
    e.I('v_lshrrev_b32 v22, 3, v21')
    e.I('v_lshl_add_u32 v20, v22, 9, v20')
    e.I('v_and_b32 v22, 7, v21')
    e.I('v_lshl_add_u32 v20, v22, 1, v20')
    e.I('v_lshl_add_u32 v23, v3, 2, s56')
    e.I('v_mov_b32 v30, 0')
    e.I('v_mov_b32 v31, 0')
    e.I('v_mov_b32 v28, 0x3f803f80')
    e.I('s_waitcnt vmcnt(%d)' % (2 if pfup else 1))
    for T in range(3):
        a = OA + 4 * T
        x = XR + 2 * T
        e.I(f'v_lshlrev_b32 v24, 16, v{x}')
        e.I(f'v_and_b32 v25, 0xffff0000, v{x}')
        e.I(f'v_lshlrev_b32 v26, 16, v{x+1}')
        e.I(f'v_and_b32 v27, 0xffff0000, v{x+1}')
        e.I(f'v_cmp_gt_u32 vcc, {72 - 16*T}, v23')
        for c in range(4):
            e.I(f'v_add_f32 v{a+c}, v{a+c}, v{24+c}')
        e.I(f'v_cvt_pk_bf16_f32 v{a}, v{a}, v{a+1}')
        e.I(f'v_cvt_pk_bf16_f32 v{a+1}, v{a+2}, v{a+3}')
        e.I(f'v_cndmask_b32 v{32+T}, v6, v20, vcc')
        e.V(f'buffer_store_dwordx2 v[{a}:{a+1}], v{32+T}, s[36:39], 0 offen offset:{1024*T}', ('st', T))
        e.I(f'v_cndmask_b32 v{a+2}, 0, v{a}, vcc')
        e.I(f'v_cndmask_b32 v{a+3}, 0, v{a+1}, vcc')
        e.I(f'v_dot2_f32_bf16 v30, v{a+2}, v28, v30')
        e.I(f'v_dot2_f32_bf16 v31, v{a+2}, v{a+2}, v31')
        e.I(f'v_dot2_f32_bf16 v30, v{a+3}, v28, v30')
        e.I(f'v_dot2_f32_bf16 v31, v{a+3}, v{a+3}, v31')
    for sw in ('v_permlane16_swap_b32', 'v_permlane32_swap_b32'):
        e.I('v_mov_b32 v36, v30')
        e.I('v_mov_b32 v37, v31')
        e.I(f'{sw} v30, v36')
        e.I(f'{sw} v31, v37')
        e.I('v_add_f32 v30, v30, v36')
        e.I('v_add_f32 v31, v31, v37')
    e.I('v_lshrrev_b32 v38, 5, v12')
    e.I('v_lshlrev_b32 v38, 12, v38')
    e.I('v_and_b32 v39, 31, v12')
    e.I('v_lshl_add_u32 v38, v39, 4, v38')
    e.I('s_and_b32 s54, s25, 3')
    e.I('s_lshl_b32 s54, s54, 10')
    e.I('s_lshr_b32 s56, s25, 2')
    e.I('s_lshl_b32 s56, s56, 9')
    e.I('s_add_u32 s54, s54, s56')
    e.I('s_lshl_b32 s56, s53, 3')
    e.I('s_add_u32 s54, s54, s56')
    e.I('v_add_u32 v38, s54, v38')
    e.I('v_cndmask_b32 v38, v6, v38, s[58:59]')
    e.V('buffer_store_dwordx2 v[30:31], v38, s[40:43], 0 offen', ('st', 9))
    st.dump()
    e.label('L_k2_done')
    e.I('s_endpgm')
    return e.finalize() + kd(name, 224, 224)

for l in range(64):
    assert (l * 57) >> 9 == l // 9
```

```python
from asmlib import Em
from common import *

XG = 1040
XSL = 16 * XG
NXS = 4
XPART = NXS * XSL
SL = 32 * 256
NS = 8
NU = 18
K1_LDS = XPART + NS * SL
KVP = 264
AC = 64
CS = 128
FB = 144
NF = 20
XF = 36

def gen_k1(name='qkv_kernel', D=7, stamps=False, prefetch=True, twait=False, PF0=132, PFS=2, nodot=False, nocs=False, nodma=False, PRO=4, dgap=1, dn=2, LIT0=2, LIT1=6, DUM=1, nogram=False, nopatch=False, nobar=False, tlb=0, pfup=True, rot=0, itst=False):
    e = Em()
    st = Stamps(e, stamps, 0)
    e.raw(head(name))
    e.I('s_cmp_ge_u32 s2, 256')
    e.I('s_cbranch_scc1 L_k1_done')
    st(0)
    e.I('s_load_dwordx4 s[4:7], s[0:1], 0')
    e.I('s_load_dwordx4 s[28:31], s[0:1], 64')
    e.I('s_load_dwordx2 s[56:57], s[0:1], 16')
    e.I('s_load_dwordx4 s[88:91], s[0:1], 32')
    e.I('s_load_dwordx2 s[86:87], s[0:1], 48')
    e.I('s_getpc_b64 s[52:53]')
    e.label('L_k1_pc')
    e.I('s_lshr_b32 s26, s2, 3')
    e.I('s_lshl_b32 s54, s26, 5')
    e.I('v_add_u32 v251, s54, v0')
    e.I('v_lshlrev_b32 v251, 7, v251')
    e.I('v_cmp_gt_u32 vcc, 32, v0')
    e.I('v_min_u32 v251, L_code_end-L_k1_pc-4, v251')
    e.I('s_and_saveexec_b64 s[58:59], vcc')
    e.I('s_cbranch_execz L_k1_nopf')
    e.I('global_load_dword v252, v251, s[52:53]')
    e.label('L_k1_nopf')
    e.I('s_mov_b64 exec, -1')
    e.I('s_mul_i32 s47, s26, 288')
    e.I('s_and_b32 s48, s2, 1')
    e.I('s_mul_i32 s48, s48, 9216')
    e.I('s_add_u32 s47, s47, s48')
    e.I('v_add_u32 v4, s47, v0')
    e.I('v_lshlrev_b32 v4, 7, v4')
    e.I(f'v_mov_b32 v6, {OOB}')
    e.I('v_add_u32 v7, 0x8000, v4')
    e.I('v_cndmask_b32 v7, v6, v7, vcc')
    e.I('s_mul_i32 s47, s26, 162')
    e.I('v_cmp_gt_u32 vcc, 162, v0')
    e.I('v_min_u32 v5, 161, v0')
    e.I('v_add_u32 v5, s47, v5')
    e.I('v_mul_u32_u24 v11, 58255, v5')
    e.I('v_lshrrev_b32 v11, 19, v11')
    e.I('v_mul_u32_u24 v8, 9, v11')
    e.I('v_sub_u32 v8, v5, v8')
    e.I('v_mul_u32_u24 v9, 11, v8')
    e.I('v_lshrrev_b32 v9, 5, v9')
    e.I('v_mul_u32_u24 v10, 3, v9')
    e.I('v_sub_u32 v8, v8, v10')
    e.I('v_mul_u32_u24 v11, 3456, v11')
    e.I('v_mul_u32_u24 v9, 1152, v9')
    e.I('v_lshl_add_u32 v11, v8, 7, v11')
    e.I('s_bfe_u32 s48, s2, 0x20001')
    e.I('s_mul_i32 s48, s48, 288')
    e.I('s_and_b32 s48, s48, 0xff80')
    e.I('v_add3_u32 v5, v11, v9, s48')
    e.I('v_cndmask_b32 v5, v6, v5, vcc')
    e.I('v_lshrrev_b32 v1, 6, v0')
    e.I('v_readfirstlane_b32 s3, v1')
    e.I('v_and_b32 v1, 63, v0')
    e.I('s_waitcnt lgkmcnt(0)')
    srd(e, 8, 4, 5, ACT_BYTES)
    srd(e, 12, 6, 7, 576 * 1728 * 2)
    e.V('buffer_load_dword v252, v4, s[8:11], 0 offen', 'pf')
    e.V('buffer_load_dword v252, v5, s[12:15], 0 offen', 'pf')
    e.V('buffer_load_dword v252, v7, s[8:11], 0 offen', 'pf')
    if twait:
        e.I('s_waitcnt vmcnt(0)')
        st(6)
    e.I('s_and_b32 s24, s2, 1')
    e.I('s_lshl_b32 s24, s24, 3')
    e.I('s_and_b32 s27, s26, 7')
    e.I('s_add_u32 s24, s24, s27')
    e.I('s_bfe_u32 s25, s2, 0x20001')
    e.I('s_lshl_b32 s25, s25, 2')
    e.I('s_lshr_b32 s26, s26, 3')
    e.I('s_add_u32 s25, s25, s26')
    e.I('s_lshl_b32 s32, s24, 7')
    e.I('s_lshl_b32 s33, s3, 5')
    e.I('s_add_u32 s32, s32, s33')
    e.I('v_and_b32 v2, 31, v1')
    e.I('v_lshrrev_b32 v3, 5, v1')
    e.I('v_lshrrev_b32 v8, 3, v1')
    e.I('v_bfe_u32 v9, v1, 4, 1')
    e.I('v_lshlrev_b32 v9, 2, v9')
    e.I('v_and_b32 v10, 7, v1')
    e.I('v_xor_b32 v10, v10, v9')
    e.I('v_mul_u32_u24 v8, 1152, v8')
    e.I('v_lshl_add_u32 v4, v10, 4, v8')
    for i in range(1, 4):
        e.I(f'v_add_u32 v{4+i}, {i*8*1152}, v4')
    e.I('s_mul_i32 s44, s32, 1152')
    e.I('v_lshrrev_b32 v12, 4, v1')
    e.I('v_and_b32 v13, 15, v1')
    e.I('v_lshlrev_b32 v14, 2, v12')
    e.I('v_xor_b32 v13, v13, v14')
    e.I('v_min_u32 v13, 14, v13')
    e.I('v_mul_u32_u24 v14, 13, v13')
    e.I('v_lshrrev_b32 v14, 6, v14')
    e.I('v_mul_u32_u24 v15, 5, v14')
    e.I('v_sub_u32 v15, v13, v15')
    e.I('v_mul_u32_u24 v14, 1152, v14')
    e.I('v_lshl_add_u32 v14, v15, 4, v14')
    e.I('v_mul_u32_u24 v12, 3456, v12')
    e.I('v_add_u32 v8, v14, v12')
    e.I(f'v_add_u32 v9, {4*3456}, v8')
    e.I('s_mul_i32 s34, s25, 72')
    e.I('s_and_b32 s34, s34, 0xfff0')
    e.I('s_and_b32 s39, s25, 1')
    e.I('s_mul_i32 s35, s3, %d' % (8 * 3456))
    e.I('s_add_u32 s35, s35, s34')
    e.I('s_mul_i32 s36, s3, %d' % (4 * XG))
    e.I('s_lshl_b32 s38, s3, 11')
    e.I(f's_add_u32 s38, s38, {XPART}')
    e.I('s_mov_b32 s62, s36')
    e.I('s_mov_b32 s63, s38')
    e.I('s_mov_b32 s46, 0')
    def dma_ops(u):
        ops = []
        if u % 2 == 0:
            for i in range(4):
                ops.append(('I', f's_add_u32 m0, s62, {i*XG}'))
                ops.append(('V', f'buffer_load_dwordx4 v{4+i}, s[8:11], s44 offen lds', ('d', u)))
            ops.append(('I', 's_add_u32 s44, s44, 128'))
        for i in range(2):
            ops.append(('I', f's_add_u32 m0, s63, {(u % 2) * SL + i*1024}'))
            ops.append(('V', f'buffer_load_dwordx4 v{8+i}, s[12:15], s35 offen lds', ('d', u)))
        ops.append(('I', f's_add_u32 s35, s35, {32*3456}'))
        if u % 2 == 1:
            ops.append(('G', [f's_add_u32 s62, s62, {XSL}', f's_add_u32 s63, s63, {2*SL}', 's_add_u32 s46, s46, 1',
                              f's_cmp_eq_u32 s46, {NXS}', 's_cselect_b32 s62, s36, s62', 's_cselect_b32 s63, s38, s63', 's_cselect_b32 s46, 0, s46']))
        return ops
    def emit(op):
        if op[0] == 'I':
            e.I(op[1])
        elif op[0] == 'G':
            for t_ in op[1]:
                e.I(t_)
        else:
            e.V(op[1], op[2])
    for u in range(PRO):
        for op in dma_ops(u):
            emit(op)
    if tlb:
        e.I('s_load_dwordx2 s[58:59], s[0:1], 56')
        e.I(f'v_lshlrev_b32 v61, {tlb}, v0')
        e.I(f'v_min_u32 v61, {WS_STATS + STATS_BYTES - 4}, v61')
        e.I('s_lshr_b32 s45, s2, 3')
        e.I('s_cmp_lg_u32 s45, 1')
        e.I('s_cbranch_scc1 L_k1_notlb')
        e.V('global_load_dword v62, v61, s[30:31]', 'pf')
        e.I(f'v_min_u32 v61, {ACT_BYTES - 4}, v61')
        e.I('s_waitcnt lgkmcnt(0)')
        e.V('global_load_dword v63, v61, s[58:59]', 'pf')
        e.label('L_k1_notlb')
        e.I('s_waitcnt lgkmcnt(0)')
    srd_off(e, 16, 30, 31, WS_PQ, PQ_BYTES)
    srd_off(e, 20, 30, 31, WS_KV, 32 * KV_HEAD_BYTES)
    srd(e, 40, 28, 29, 256)
    e.I('s_lshl_b32 s37, s25, 2')
    e.I('v_mov_b32 v253, 1')
    e.I(f'v_mov_b32 v254, {OOB}')
    e.I('v_cmp_eq_u32 vcc, 0, v1')
    e.I('v_cndmask_b32 v254, v254, 0, vcc')
    st(1)
    e.I('v_and_b32 v12, 3, v1')
    e.I('v_bfe_u32 v13, v1, 2, 2')
    e.I('v_bfe_u32 v14, v1, 4, 1')
    e.I('v_lshl_add_u32 v15, v3, 3, v13')
    e.I('v_lshlrev_b32 v15, 8, v15')
    e.I(f'v_add_u32 v15, {XPART}, v15')
    e.I('v_lshl_add_u32 v26, v14, 2, v12')
    e.I('v_add_u32 v26, s39, v26')
    e.I('s_lshl_b32 s45, s3, 3')
    for T in range(5):
        if T < 4:
            e.I(f'v_add_u32 v27, {8*T}, v26')
        else:
            e.I('v_add_u32 v27, s45, v26')
        e.I('v_bfe_u32 v28, v27, 3, 2')
        e.I('v_xor_b32 v28, v28, v13')
        e.I('v_and_b32 v27, 7, v27')
        e.I('v_lshl_add_u32 v27, v27, 3, v15')
        e.I(f'v_lshl_add_u32 v{16+T}, v28, 6, v27')
    e.I('v_lshrrev_b32 v30, 3, v2')
    e.I(f'v_mul_u32_u24 v30, {XG}, v30')
    e.I('v_and_b32 v31, 7, v2')
    e.I('v_lshl_add_u32 v30, v31, 7, v30')
    e.I('v_lshl_add_u32 v30, v3, 4, v30')
    e.I('v_add_u32 v30, s36, v30')
    e.I('v_bfe_u32 v31, v2, 1, 1')
    e.I('v_lshl_add_u32 v26, v31, 6, v30')
    e.I('v_xor_b32 v31, 1, v31')
    e.I('v_lshl_add_u32 v27, v31, 6, v30')
    if prefetch:
        e.I(f's_add_u32 s82, s2, {rot}')
        e.I('s_and_b32 s82, s82, 7')
        e.I('s_lshr_b32 s83, s2, 3')
        e.I('s_lshl_b32 s83, s83, 2')
        e.I('s_add_u32 s83, s83, s3')
        e.I('s_mul_i32 s84, s83, 41')
        e.I('s_mul_i32 s85, s82, 1152')
        e.I('v_min_u32 v248, 40, v1')
        e.I('v_add_u32 v248, s84, v248')
        e.I('v_min_u32 v248, 5183, v248')
        e.I('v_mul_u32_u24 v249, 58255, v248')
        e.I('v_lshrrev_b32 v249, 19, v249')
        e.I('v_mul_u32_u24 v250, 9, v249')
        e.I('v_sub_u32 v250, v248, v250')
        e.I('v_mul_u32_u24 v249, 9216, v249')
        e.I('v_lshl_add_u32 v249, v250, 7, v249')
        e.I('v_add_u32 v249, s85, v249')
        e.I('v_lshlrev_b32 v248, 7, v248')
    e.I('v_mov_b32 v58, 0')
    pf_ops = {PF0 - 1: 'buffer_load_dword v59, v58, s[40:43], s37 offen offset:64 sc0 sc1'}
    if prefetch:
        pf_ops.update({PF0: 'global_load_dword v244, v248, s[56:57]', PF0 + PFS: 'global_load_dword v245, v249, s[88:89]',
              PF0 + 2 * PFS: 'global_load_dword v246, v249, s[90:91]' if pfup else 'global_load_dword v246, v248, s[56:57]'})
    for i in range(4):
        e.I(f'v_mov_b32 v{32+i}, 0x3f803f80')
    e.I('v_cmp_le_u32 s[60:61], 24, v2')
    NM = 36 * 5
    GR = 224
    e.I('s_mov_b32 s47, 0')
    def reads(i):
        s, T = i // 5, i % 5
        u, ks = s // 2, s % 2
        if T == 0 and s % 4 == 0 and s > 0:
            e.I('s_add_u32 s47, s47, 1')
            e.I(f's_cmp_eq_u32 s47, {NXS}')
            e.I(f's_cselect_b32 s48, {-4*SL}, {2*SL}' if False else f's_mov_b32 s48, {2*SL}')
            e.I(f's_mov_b32 s49, {XSL}')
            e.I(f's_cselect_b32 s48, {(-2*(NXS-1)*SL) & 0xffffffff:#x}, s48')
            e.I(f's_cselect_b32 s49, {(-(NXS-1)*XSL) & 0xffffffff:#x}, s49')
            e.I('s_cselect_b32 s47, 0, s47')
            for t in range(5):
                e.I(f'v_add_u32 v{16+t}, s48, v{16+t}')
            e.I('v_add_u32 v26, s49, v26')
            e.I('v_add_u32 v27, s49, v27')
        if T == 0:
            x = XF + 4 * (s % 4)
            e.L(f'ds_read_b128 v[{x}:{x+3}], v{26 + (s % 4) // 2} offset:{(s % 2)*32}', ('f', i))
        f = FB + 4 * (i % NF)
        o = (u % 2) * SL + ks * 16 * 256
        e.L(f'ds_read_b64_tr_b16 v[{f}:{f+1}], v{16+T} offset:{o}', ('f', i))
        e.L(f'ds_read_b64_tr_b16 v[{f+2}:{f+3}], v{16+T} offset:{o+1024}', ('f', i))
    dq = []
    def barrier(u):
        while dq and any(op[0] == 'V' and op[2][1] <= u + 1 for op in dq):
            emit(dq.pop(0))
        e.wait_vm(('d', u))
        if not nobar: e.I('s_barrier')
        if u >= 2 and u + NS - 2 < NU + DUM:
            dq.extend(dma_ops(u + NS - 2))
    def zero_init():
        e.I('s_cmp_lg_u32 s3, 3')
        e.I('s_cbranch_scc1 L_k1_noinit')
        e.I('s_cmp_ge_u32 s2, 16')
        e.I('s_cbranch_scc1 L_k1_noinit')
        e.I('s_mul_i32 s45, s2, %d' % (2 * KV_HEAD_BYTES))
        e.I('v_lshlrev_b32 v255, 4, v1')
        e.I('v_cmp_gt_u32 vcc, 36, v1')
        e.I(f'v_mov_b32 v60, {OOB}')
        e.I('v_cndmask_b32 v60, v60, v255, vcc')
        for i in range(4):
            e.I(f'v_mov_b32 v{240+i}, 0')
        for i in range(4):
            e.I(f'buffer_store_dwordx4 v[240:243], v{255 if i < 3 else 60}, s[20:23], s45 offen offset:{1024*i} sc0 sc1')
        e.I('s_waitcnt vmcnt(0)')
        e.I('s_lshl_b32 s45, s2, 2')
        e.I('buffer_atomic_add v253, v254, s[40:43], s45 offen offset:64')
        e.label('L_k1_noinit')
    for r in list(range(AC, CS + 16)) + list(range(GR, GR + 16)):
        e.I(f'v_mov_b32 v{r}, 0')
    barrier(0)
    for u in range(PRO, NS):
        dq.extend(dma_ops(u))
    for i in range(D):
        reads(i)
    NMX = NM + 40
    IT0, NIT = LIT0, LIT1 - LIT0
    for i in range(NM):
        s, T = i // 5, i % 5
        if itst and i % 20 == 0 and i // 20 in (0, 1, 2, 4, 6, 8):
            st({0: 2, 1: 3, 2: 4, 4: 5, 6: 6, 8: 7}[i // 20])
        if i % 20 == 0 and IT0 <= i // 20 <= LIT1:
            k = i // 20 - IT0
            if k == 0:
                zero_init()
                e.I(f's_mov_b32 s55, {NIT - 1}')
            else:
                e.I('s_sub_u32 s55, s55, 1')
                e.I('s_cbranch_scc1 L_k1_loop')
            e.raw(f';@K1ITER {k}')
        if i in pf_ops:
            e.V(pf_ops[i], ('pfl', i))
        j = i + D
        n = 0
        while dq and n < dn:
            op = dq.pop(0); emit(op); n += 1
        if j < NM:
            if j % 10 == 0:
                barrier(j // 10)
            reads(j)
        e.wait_lg(('f', i))
        x = XF + 4 * (s % 4)
        f = FB + 4 * (i % NF)
        if T < 4:
            acc = f'v[{AC+16*T}:{AC+16*T+15}]'
            e.I(f'v_mfma_f32_32x32x16_bf16 {acc}, v[{f}:{f+3}], v[{x}:{x+3}], {acc}')
        else:
            acc = f'v[{CS}:{CS+15}]'
            e.I(f'v_mfma_f32_32x32x16_bf16 {acc}, v[{f}:{f+3}], v[32:35], {acc}')
        if T == 1 and not nopatch:
            e.wait_lg(('f', i + 2))
            f3 = FB + 4 * ((i + 2) % NF)
            for c in range(4):
                e.I(f'v_cndmask_b32 v{f3+c}, v{f3+c}, v32, s[60:61]')
        if T == 2 and not nogram:
            acc = f'v[{GR}:{GR+15}]'
            e.I(f'v_mfma_f32_32x32x16_bf16 {acc}, v[{x}:{x+3}], v[{x}:{x+3}], {acc}')
    e.wait_vm(('d', NU + DUM - 1))
    if not itst: st(2)
    elif 2 == 2: st(8)
    e.I('v_and_b32 v36, 1, v2');  e.I('v_cmp_eq_u32 s[62:63], 1, v36')
    e.I('v_and_b32 v36, 2, v2');  e.I('v_cmp_eq_u32 s[50:51], 2, v36')
    e.I('v_and_b32 v36, 8, v2');  e.I('v_cmp_eq_u32 s[48:49], 8, v36')
    e.I('v_and_b32 v36, 16, v2'); e.I('v_cmp_eq_u32 s[46:47], 16, v36')
    for k_ in range(8):
        e.I(f'v_cndmask_b32 v{GR+2*k_}, v{GR+2*k_}, v{GR+2*k_+1}, s[62:63]')
    for k_ in range(4):
        e.I(f'v_cndmask_b32 v{GR+4*k_}, v{GR+4*k_}, v{GR+4*k_+2}, s[50:51]')
    for k_ in range(2):
        e.I(f'v_cndmask_b32 v{GR+8*k_}, v{GR+8*k_}, v{GR+8*k_+4}, s[48:49]')
    e.I(f'v_cndmask_b32 v40, v{GR}, v{GR+8}, s[46:47]')
    e.I('v_bfe_u32 v36, v2, 2, 1')
    e.I('v_cmp_eq_u32 vcc, v36, v3')
    e.I('v_cndmask_b32 v40, 0, v40, vcc')
    e.I('v_mov_b32 v41, v40')
    e.I('v_permlane32_swap_b32 v40, v41')
    e.I('v_add_f32 v40, v40, v41')
    e.I(f'v_mov_b32 v36, v{AC+48+12}')
    inv = 0x3ae38e39
    e.I(f'v_mul_f32 v36, {inv:#x}, v36')
    e.I(f'v_mul_f32 v40, {inv:#x}, v40')
    e.I('v_fma_f32 v40, -v36, v36, v40')
    e.I('v_max_f32 v40, 0, v40')
    e.I('v_add_f32 v40, 0x3727c5ac, v40')
    e.I('v_rsq_f32 v44, v40')
    e.I('v_mul_f32 v45, v36, v44')
    e.I('v_sub_f32 v45, 0, v45')
    CSL = 40960
    e.I('s_barrier')
    e.I('s_lshl_b32 s45, s3, 7')
    e.I('v_lshl_add_u32 v46, v3, 4, s45')
    e.I('v_cmp_eq_u32 vcc, 0, v2')
    e.I('s_and_saveexec_b64 s[58:59], vcc')
    for a in range(4):
        e.L(f'ds_write_b128 v46, v[{CS+4*a}:{CS+4*a+3}] offset:{CSL + 32*a}', 'w')
    e.I('s_mov_b64 exec, -1')
    e.I('v_lshlrev_b32 v46, 4, v3')
    e.I('s_waitcnt lgkmcnt(0)')
    e.lg_done = len(e.lg)
    e.I('s_barrier')
    groups_all = [(T, a) for T in range(4) for a in range(4) if (T, a) != (3, 3)]
    for gi, (T, a) in enumerate(groups_all):
        e.L(f'ds_read_b128 v[{FB+4*gi}:{FB+4*gi+3}], v46 offset:{CSL + 128*T + 32*a}', ('c', gi))
    def R(T, a, c):
        return AC + 16 * T + 4 * a + c
    e.I('v_mov_b32 v52, v45'); e.I('v_mov_b32 v53, v45'); e.I('v_mov_b32 v45, v44')
    e.I('v_mov_b32 v54, 0x358637bd'); e.I('v_mov_b32 v55, 0x358637bd')
    e.I(f'v_mov_b32 v56, {LOG2E:#x}'); e.I(f'v_mov_b32 v57, {LOG2E:#x}')
    for gi, (T, a) in enumerate(groups_all):
        e.wait_lg(('c', gi))
        for c in (0, 2):
            t = FB + 4 * gi + c
            if gi < 10:
                e.I(f'v_pk_fma_f32 v[{t}:{t+1}], v[{t}:{t+1}], v[52:53], v[54:55]')
            else:
                e.I(f'v_pk_mul_f32 v[{t}:{t+1}], v[{t}:{t+1}], v[52:53]')
        for c in (0, 2):
            t = FB + 4 * gi + c
            r = R(T, a, c)
            e.I(f'v_pk_fma_f32 v[{r}:{r+1}], v[{r}:{r+1}], v[44:45], v[{t}:{t+1}]')
    if not itst: st(3)
    rs = [R(T, a, c) for (T, a) in groups_all[:10] for c in range(4)]
    ts = [FB + i for i in range(40)]
    for r, t in zip(rs, ts):
        e.I(f'v_min_f32 v{t}, 0, v{r}')
    for t in ts[::2]:
        e.I(f'v_pk_mul_f32 v[{t}:{t+1}], v[{t}:{t+1}], v[56:57]')
    for r, t in zip(rs, ts):
        e.I(f'v_exp_f32 v{t}, v{t}')
    for r, t in zip(rs, ts):
        e.I(f'v_max_f32 v{r}, v54, v{r}')
    for r, t in zip(rs[::2], ts[::2]):
        e.I(f'v_pk_add_f32 v[{r}:{r+1}], v[{r}:{r+1}], v[{t}:{t+1}]')
    def P(T, a):
        return 184 + (T * 4 + a) * 2
    for (T, a) in groups_all:
        e.I(f'v_cvt_pk_bf16_f32 v{P(T,a)}, v{R(T,a,0)}, v{R(T,a,1)}')
        e.I(f'v_cvt_pk_bf16_f32 v{P(T,a)+1}, v{R(T,a,2)}, v{R(T,a,3)}')
    e.I('v_add_u32 v30, s33, v2')
    e.I(f'v_mul_u32_u24 v30, {KVP}, v30')
    def pos(col):
        return (col // 18) * 64 + (col % 18) * 2
    DUMMY = 60
    groups = [((1, 1), 0, 0), ((1, 2), 0, 2), ((1, 3), 0, 4), ((2, 0), 0, 6), ((2, 1), 0, 8),
              ((2, 2), 128, 0), ((2, 3), 128, 2), ((3, 0), 128, 4), ((3, 1), 128, 6), ((3, 2), 128, 8)]
    e.I('v_lshl_add_u32 v31, v3, 3, v30')
    k = 0
    for (T, a), part, ch0 in groups:
        for pr in range(2):
            x0 = part + pos(4 * ch0 + 2 * pr)
            x1 = part + pos(4 * (ch0 + 1) + 2 * pr) if ch0 < 8 else DUMMY
            d = x1 - x0
            if d == 8:
                e.L(f'ds_write_b32 v31, v{P(T,a)+pr} offset:{x0}', 'w')
            else:
                t = 47 + (k % 4); k += 1
                e.I(f'v_mov_b32 v{t}, {d}')
                e.I(f'v_mad_i32_i24 v{t}, v3, v{t}, v30')
                e.L(f'ds_write_b32 v{t}, v{P(T,a)+pr} offset:{x0}', 'w')
    e.I('v_lshl_add_u32 v51, v3, 6, v30')
    e.I('v_mov_b32 v52, 0x3f80')
    e.L('ds_write_b32 v51, v52 offset:164', 'w')
    e.I('s_mul_i32 s45, s25, 72')
    e.I('v_add_u32 v53, s32, v2')
    e.I(f'v_mul_u32_u24 v53, {PQ_PITCH}, v53')
    e.I('v_lshl_add_u32 v54, v3, 3, v53')
    e.I('v_add_u32 v55, s45, v54')
    e.I(f'v_mov_b32 v57, {OOB}')
    e.I('v_cmp_eq_u32 s[48:49], 0, v3')
    e.I('v_cndmask_b32 v56, v57, v55, s[48:49]')
    e.I('s_waitcnt lgkmcnt(0)')
    e.lg_done = len(e.lg)
    e.I('s_barrier')
    if not itst: st(4)
    elif 4 == 2: st(8)
    if stamps and not itst:
        st(5)
    e.I('s_cmp_ge_u32 s3, 2')
    e.I('s_cbranch_scc1 L_k1_stores')
    e.I('v_lshl_add_u32 v15, v3, 3, v13')
    e.I(f'v_mul_u32_u24 v15, {KVP}, v15')
    e.I('v_lshl_add_u32 v15, v14, 5, v15')
    e.I('v_lshl_add_u32 v15, v12, 3, v15')
    e.I('s_lshl_b32 s50, s3, 6')
    e.I('v_add_u32 v15, s50, v15')
    KA = 128
    for ks in range(8):
        r = 64 + 8 * ks
        e.L(f'ds_read_b64_tr_b16 v[{r}:{r+1}], v15 offset:{ks*16*KVP + 128}', ('k', ks))
        e.L(f'ds_read_b64_tr_b16 v[{r+2}:{r+3}], v15 offset:{ks*16*KVP + 128 + 4*KVP}', ('k', ks))
        e.L(f'ds_read_b64_tr_b16 v[{r+4}:{r+5}], v15 offset:{ks*16*KVP}', ('k', ks))
        e.L(f'ds_read_b64_tr_b16 v[{r+6}:{r+7}], v15 offset:{ks*16*KVP + 4*KVP}', ('k', ks))
        if ks >= 2:
            k2 = ks - 2
            e.wait_lg(('k', k2))
            r2 = 64 + 8 * k2
            e.I(f'v_mfma_f32_32x32x16_bf16 v[{KA}:{KA+15}], v[{r2}:{r2+3}], v[{r2+4}:{r2+7}], {"v[%d:%d]" % (KA, KA+15) if k2 else "0"}')
    e.I('s_lshl_b32 s50, s25, 1')
    e.I('s_add_u32 s50, s50, s3')
    e.I('s_mul_i32 s50, s50, %d' % KV_HEAD_BYTES)
    e.I('v_mul_u32_u24 v18, 384, v3')
    e.I('v_lshl_add_u32 v18, v2, 2, v18')
    e.I('v_cmp_gt_u32 vcc, 18, v2')
    e.I('v_cndmask_b32 v18, v57, v18, vcc')
    e.I('v_cndmask_b32 v19, v57, v18, s[48:49]')
    for k2 in (6, 7):
        e.wait_lg(('k', k2))
        r2 = 64 + 8 * k2
        e.I(f'v_mfma_f32_32x32x16_bf16 v[{KA}:{KA+15}], v[{r2}:{r2+3}], v[{r2+4}:{r2+7}], v[{KA}:{KA+15}]')
    e.I('s_waitcnt vmcnt(%d)' % (3 if prefetch else 0))
    e.label('L_k1_poll')
    e.I('v_readfirstlane_b32 s51, v59')
    e.I('s_cmp_lg_u32 s51, 0')
    e.I('s_cbranch_scc1 L_k1_go')
    e.I('s_sleep 2')
    e.I('buffer_load_dword v59, v58, s[40:43], s37 offen offset:64 sc0 sc1')
    e.I('s_waitcnt vmcnt(0)')
    e.I('s_branch L_k1_poll')
    e.label('L_k1_go')
    if not itst: st(5)
    e.I('s_nop 7')
    e.I('s_nop 3')
    for a in range(2):
        for c in range(4):
            e.I(f'buffer_atomic_add_f32 v{KA+4*a+c}, v18, s[20:23], s50 offen offset:{(8*a+c)*96}')
    for c in range(3):
        e.I(f'buffer_atomic_add_f32 v{KA+8+c}, v19, s[20:23], s50 offen offset:{(16+c)*96}')
    e.label('L_k1_stores')
    for a in range(4):
        e.I(f'buffer_store_dwordx2 v[{P(0,a)}:{P(0,a)+1}], v55, s[16:19], 0 offen offset:{16*a}')
    e.I(f'buffer_store_dwordx2 v[{P(1,0)}:{P(1,0)+1}], v56, s[16:19], 0 offen offset:64')
    e.I('s_cmp_lg_u32 s25, 15')
    e.I('s_cbranch_scc1 L_k1_fin')
    e.I('v_mov_b32 v60, 0')
    e.I('v_mov_b32 v61, 0')
    e.I('buffer_store_dwordx2 v[60:61], v54, s[16:19], 0 offen offset:1152')
    e.label('L_k1_fin')
    st.dump()
    e.label('L_k1_done')
    e.I('s_endpgm')
    txt = e.finalize()
    lines = txt.split('\n')
    idx = [n for n, l in enumerate(lines) if l.startswith(';@K1ITER')]
    segs = [lines[idx[k] + 1: idx[k + 1]] for k in range(len(idx) - 1)]
    for k in range(1, len(segs)):
        if segs[k] != segs[0]:
            for a, b in zip(segs[0], segs[k]):
                if a != b:
                    raise Exception(f'K1 loop body mismatch iter {k}: {a} | {b}')
            raise Exception('K1 loop body length mismatch')
    body = list(segs[0])
    assert body[-1].strip() == 's_cbranch_scc1 L_k1_loop'
    body[-1] = '    s_cbranch_scc0 L_k1_loop'
    lines = lines[:idx[0]] + ['L_k1_loop:'] + body + lines[idx[-1] + 1:]
    return '\n'.join(lines) + kd(name, 256, 256)

for g in range(192):
    assert (g * 2731) >> 16 == g // 24, g
for c in range(29):
    assert (c * 13) >> 7 == c // 10, c
```

```python
from asmlib import Em
from common import *

PQ_LDS = 64 * PQ_PITCH
WO_LDS = PQ_LDS
K2_LDS = PQ_LDS + 576 * 144 + 1024

def gen_k2(name='attn_kernel', stamps=False, pfup=False, rot=0, v3=True):
    e = Em()
    st = Stamps(e, stamps, 1)
    e.raw(head(name))
    e.I('s_cmp_ge_u32 s2, 256')
    e.I('s_cbranch_scc1 L_k2_done')
    st(0)
    e.I('s_load_dwordx2 s[4:5], s[0:1], 0')
    e.I('s_load_dwordx2 s[6:7], s[0:1], 16')
    e.I('s_load_dwordx2 s[30:31], s[0:1], 72')
    e.I('s_load_dwordx4 s[84:87], s[0:1], 40')
    e.I('v_lshrrev_b32 v1, 6, v0')
    e.I('v_readfirstlane_b32 s3, v1')
    e.I('v_and_b32 v1, 63, v0')
    e.I('s_and_b32 s24, s2, 7')
    e.I('s_lshl_b32 s24, s24, 2')
    e.I('s_lshr_b32 s25, s2, 3')
    e.I('s_and_b32 s26, s25, 3')
    e.I('s_add_u32 s24, s24, s26')
    e.I('s_lshr_b32 s25, s25, 2')
    e.I('v_and_b32 v2, 15, v1')
    e.I('v_lshrrev_b32 v3, 4, v1')
    e.I(f'v_mov_b32 v6, {OOB}')
    e.I('v_min_u32 v5, 2, v3')
    e.I('v_lshlrev_b32 v5, 5, v5')
    e.I('s_lshl_b32 s28, s3, 13')
    e.I(f's_add_u32 s28, s28, {WO_LDS}')
    e.I('v_add_u32 v5, s28, v5')
    e.I('v_mul_u32_u24 v4, 96, v2')
    e.I('v_add_u32 v4, v4, v5')
    e.I('v_cmp_gt_u32 s[60:61], 3, v3')
    e.I('v_and_b32 v8, 3, v2')
    e.I('v_cmp_eq_u32 s[44:45], 2, v8')
    e.I('v_and_b32 v7, 1, v2')
    e.I('v_cndmask_b32 v7, v7, 2, s[44:45]')
    e.I('v_mul_u32_u24 v7, 96, v7')
    e.I('v_add3_u32 v7, v7, v5, 0')
    e.I('v_add_u32 v7, 1536, v7')
    e.I('v_cmp_gt_u32 s[46:47], 2, v2')
    e.I('s_or_b64 s[44:45], s[44:45], s[46:47]')
    e.I('s_and_b64 s[62:63], s[44:45], s[60:61]')
    e.I('s_mul_i32 s27, s3, %d' % (4 * KV_HEAD_BYTES))
    e.I('v_lshlrev_b32 v8, 4, v1')
    e.I('v_lshlrev_b32 v9, 4, v0')
    e.I('s_mul_i32 s29, s24, %d' % PQ_LDS)
    e.I('s_lshl_b32 s33, s3, 10')
    e.I('v_mul_u32_u24 v10, 57, v1')
    e.I('v_lshrrev_b32 v10, 9, v10')
    e.I('v_mul_u32_u24 v11, 9, v10')
    e.I('v_sub_u32 v11, v1, v11')
    e.I('v_mul_u32_u24 v10, 1152, v10')
    e.I('v_lshl_add_u32 v10, v11, 4, v10')
    e.I('s_mul_i32 s34, s25, 144')
    e.I('s_mul_i32 s35, s3, %d' % (6 * 1152))
    e.I('s_add_u32 s35, s35, s34')
    e.I('v_add_u32 v10, s35, v10')
    e.I('s_mul_i32 s48, s3, 864')
    e.I('s_lshr_b32 s56, s2, 3')
    e.I('s_mul_i32 s57, s56, 73')
    e.I('s_and_b32 s58, s2, 7')
    e.I('s_mul_i32 s58, s58, 2336')
    e.I('s_add_u32 s57, s57, s58')
    e.I('v_add_u32 v24, s57, v0')
    e.I('v_lshlrev_b32 v24, 7, v24')
    e.I('v_cmp_gt_u32 vcc, 73, v0')
    e.I('v_cndmask_b32 v24, v6, v24, vcc')
    e.I('s_mul_i32 s57, s56, 15')
    e.I('v_subrev_u32 v25, 128, v0')
    e.I('v_cmp_gt_u32 vcc, 15, v25')
    e.I('v_add_u32 v25, s57, v25')
    e.I('v_lshlrev_b32 v25, 7, v25')
    e.I('v_cndmask_b32 v25, v6, v25, vcc')
    e.I('s_waitcnt lgkmcnt(0)')
    srd_off(e, 20, 30, 31, WS_KV, 32 * KV_HEAD_BYTES)
    srd_off(e, 16, 30, 31, WS_PQ, PQ_BYTES)
    e.V('buffer_load_dword v26, v24, s[16:19], 0 offen', 'pf')
    e.V('buffer_load_dword v27, v25, s[20:23], 0 offen', 'pf')
    KVR = 64
    e.I('s_mov_b32 m0, s28')
    for j in range(8):
        e.V(f'buffer_load_dwordx4 v8, s[20:23], s27 offen offset:{1024*(j%4)} lds', ('kv', j))
        if j == 3:
            e.I('s_add_u32 m0, m0, 0x1000')
            e.I('s_add_u32 s27, s27, 0x1000')
    e.I('s_mov_b32 m0, s33')
    for j in range(10):
        if j == 9:
            e.I('s_cmp_lg_u32 s3, 0')
            e.I('s_cbranch_scc1 L_k2_skip_pq')
        e.V('buffer_load_dwordx4 v9, s[16:19], s29 offen lds', ('pq', j) if j < 9 else 'pf')
        if j < 9:
            e.I('s_add_u32 m0, m0, 0x2000')
            e.I('s_add_u32 s29, s29, 0x2000')
    e.label('L_k2_skip_pq')
    e.wait_vm(('kv', 7))
    for hh in range(4):
        for tl, vo in ((0, 4), (1, 7)):
            r = KVR + (hh * 2 + tl) * 8
            o = hh * KV_HEAD_BYTES - 8 * hh
            if hh % 2 == 0:
                e.L(f'ds_read_b128 v[{r}:{r+3}], v{vo} offset:{o}', ('kvr', hh))
                e.L(f'ds_read_b128 v[{r+4}:{r+7}], v{vo} offset:{o+16}', ('kvr', hh))
            else:
                for c in range(4):
                    e.L(f'ds_read_b64 v[{r+2*c}:{r+2*c+1}], v{vo} offset:{o+8*c}', ('kvr', hh))
    e.I('s_waitcnt lgkmcnt(0)')
    e.lg_done = len(e.lg)
    st(1)
    e.I(f'v_mul_u32_u24 v14, {PQ_PITCH}, v2')
    e.I('s_mul_i32 s57, s3, 144')
    e.I('v_add_u32 v14, s57, v14')
    e.I('v_lshl_add_u32 v15, v3, 3, v14')
    e.I('v_min_u32 v16, 2, v3')
    e.I('v_lshl_add_u32 v14, v16, 4, v14')
    e.I('v_cmp_eq_u32 s[58:59], 0, v3')
    KF = 128
    for f in range(8):
        r = KVR + f * 8
        for c in range(4):
            e.I(f'v_cvt_pk_bf16_f32 v{KF+4*f+c}, v{r+2*c}, v{r+2*c+1}')
        for c in range(4):
            e.I(f'v_cndmask_b32 v{KF+4*f+c}, 0, v{KF+4*f+c}, s[{60 if f % 2 == 0 else 62}:{61 if f % 2 == 0 else 63}]')
    st(2)
    e.I('s_waitcnt vmcnt(0)')
    e.I('s_barrier')
    st(3)
    PB = 64
    ACC = 160
    for mt in range(4):
        mo = mt * 16 * PQ_PITCH
        for hh in range(4):
            r = PB + (mt * 4 + hh) * 4
            e.L(f'ds_read_b128 v[{r}:{r+3}], v14 offset:{mo + 32*hh}', ('b', mt, hh))
    srd(e, 12, 6, 7, 576 * 576 * 2)
    srd(e, 8, 4, 5, ACT_BYTES)
    e.I(f's_add_u32 m0, s48, {WO_LDS}')
    e.I('s_mov_b32 s49, 0')
    e.I('s_mov_b32 s50, -1')
    e.I('s_mov_b32 s51, 0x3fffff')
    e.I('s_mov_b64 exec, s[50:51]')
    for j in range(12):
        e.V('buffer_load_dwordx4 v10, s[12:15], s49 offen lds', ('wo', j))
        if j < 11:
            e.I('s_add_u32 m0, m0, 6912')
            e.I(f's_add_u32 s49, s49, {48*1152}')
    e.I('s_mov_b64 exec, -1')
    e.I('s_and_b32 s52, s3, 3')
    e.I('s_lshr_b32 s53, s3, 2')
    e.I('s_lshl_b32 s35, s24, 6')
    e.I('s_lshl_b32 s54, s52, 4')
    e.I('s_add_u32 s35, s35, s54')
    e.I('v_add_u32 v12, s35, v2')
    e.I('v_mul_u32_u24 v13, 1152, v12')
    e.I('v_lshl_add_u32 v13, v3, 3, v13')
    e.I('s_mul_i32 s55, s53, 96')
    e.I('s_add_u32 s56, s55, s34')
    e.I('v_add_u32 v13, s56, v13')
    XR = 40
    for j in range(3):
        e.V(f'buffer_load_dwordx2 v[{XR+2*j}:{XR+2*j+1}], v13, s[8:11], 0 offen offset:{32*j}', ('x', j))
    e.I('s_lshr_b32 s82, s2, 3')
    e.I('s_lshl_b32 s82, s82, 3')
    e.I('s_add_u32 s82, s82, s3')
    e.I('s_mul_i32 s82, s82, 21')
    e.I(f's_add_u32 s83, s2, {rot}')
    e.I('s_and_b32 s83, s83, 7')
    e.I('s_mul_i32 s83, s83, 5184')
    e.I('v_min_u32 v46, 20, v1')
    e.I('v_add_u32 v46, s82, v46')
    e.I('v_min_u32 v46, 5183, v46')
    if pfup:
        e.I('v_mul_u32_u24 v48, 58255, v46')
        e.I('v_lshrrev_b32 v48, 19, v48')
        e.I('v_mul_u32_u24 v49, 9, v48')
        e.I('v_sub_u32 v49, v46, v49')
        e.I('v_mul_u32_u24 v48, 9216, v48')
        e.I('v_lshl_add_u32 v48, v49, 7, v48')
        e.I('s_and_b32 s88, s2, 7')
        e.I('s_mul_i32 s88, s88, 1152')
        e.I('v_add_u32 v48, s88, v48')
        e.V('global_load_dword v50, v48, s[84:85]', ('pfl', 1))
    e.I('v_add_u32 v46, s83, v46')
    e.I('v_lshlrev_b32 v46, 7, v46')
    e.V('global_load_dword v47, v46, s[86:87]', ('pfl', 0))
    srd_off(e, 36, 30, 31, WS_H, ACT_BYTES)
    srd_off(e, 40, 30, 31, WS_STATS, STATS_BYTES)
    for half in range(2):
        for idx in range(8 * half, 8 * half + 8):
            mt, hh = idx // 4, idx % 4
            r = PB + idx * 4
            acc = ACC + (idx % 8) * 8
            e.wait_lg(('b', mt, hh))
            e.I(f'v_mfma_f32_16x16x32_bf16 v[{acc}:{acc+3}], v[{KF+8*hh}:{KF+8*hh+3}], v[{r}:{r+3}], 0')
            e.I(f'v_mfma_f32_16x16x32_bf16 v[{acc+4}:{acc+7}], v[{KF+8*hh+4}:{KF+8*hh+7}], v[{r}:{r+3}], 0')
        accs = [ACC + k * 8 for k in range(8)]
        for a in accs:
            e.I(f'v_add_f32 v{a+6}, 0x358637bd, v{a+6}')
        for a in accs:
            e.I(f'v_rcp_f32 v{a+6}, v{a+6}')
        for c in range(6):
            for a in accs:
                e.I(f'v_mul_f32 v{a+c}, v{a+c}, v{a+6}')
        for a in accs:
            e.I(f'v_cvt_pk_bf16_f32 v{a}, v{a}, v{a+1}')
            e.I(f'v_cvt_pk_bf16_f32 v{a+1}, v{a+2}, v{a+3}')
            e.I(f'v_cvt_pk_bf16_f32 v{a+2}, v{a+4}, v{a+5}')
        for mt in (2 * half, 2 * half + 1):
            if mt > 0:
                e.I(f'v_add_u32 v{20+mt}, {mt*16*PQ_PITCH}, v15')
        for k, a in enumerate(accs):
            mt, hh = 2 * half + k // 4, k % 4
            wb = 15 if mt == 0 else 20 + mt
            if hh % 2 == 0:
                e.L(f'ds_write_b64 v{wb}, v[{a}:{a+1}] offset:{36*hh}', 'w')
            else:
                e.L(f'ds_write2_b32 v{wb}, v{a}, v{a+1} offset0:{9*hh} offset1:{9*hh+1}', 'w')
        e.I('s_mov_b64 exec, s[58:59]')
        for k, a in enumerate(accs):
            mt, hh = 2 * half + k // 4, k % 4
            e.L(f'ds_write_b32 v15, v{a+2} offset:{mt*16*PQ_PITCH + 36*hh + 32}', 'w')
        e.I('s_mov_b64 exec, -1')
    st(4)
    e.I('s_mul_i32 s57, s52, %d' % (16 * PQ_PITCH))
    e.I(f'v_mul_u32_u24 v14, {PQ_PITCH}, v2')
    e.I('v_lshl_add_u32 v14, v3, 4, v14')
    e.I('v_add_u32 v14, s57, v14')
    e.I('v_and_b32 v18, 3, v1')
    e.I('v_bfe_u32 v19, v1, 2, 2')
    e.I('v_lshl_add_u32 v19, v3, 3, v19')
    e.I('v_mul_u32_u24 v19, 144, v19')
    e.I('v_lshl_add_u32 v19, v18, 3, v19')
    e.I(f's_add_u32 s57, s55, {WO_LDS}')
    e.I('v_add_u32 v19, s57, v19')
    e.I(f'v_add_u32 v18, {9*32*144}, v19')
    e.I('s_waitcnt vmcnt(%d) lgkmcnt(0)' % (5 if pfup else 4))
    e.lg_done = len(e.lg)
    e.I('s_barrier')
    st(5)
    NB = 3
    def rd(s):
        bb = 64 + (s % NB) * 16
        e.L(f'ds_read_b128 v[{bb}:{bb+3}], v14 offset:{64*s}', ('g', s))
        base = 19 if s < 9 else 18
        so = (s % 9) * 32 * 144
        for T in range(3):
            r = bb + 4 + 4 * T
            e.L(f'ds_read_b64_tr_b16 v[{r}:{r+1}], v{base} offset:{so + 32*T}', ('g', s))
            e.L(f'ds_read_b64_tr_b16 v[{r+2}:{r+3}], v{base} offset:{so + 32*T + 4*144}', ('g', s))
    rd(0); rd(1)
    OA = 128
    for s in range(18):
        if s + 2 < 18:
            rd(s + 2)
        e.wait_lg(('g', s))
        bb = 64 + (s % NB) * 16
        for T in range(3):
            c = f'v[{OA+4*T}:{OA+3+4*T}]' if s > 0 else '0'
            e.I(f'v_mfma_f32_16x16x32_bf16 v[{OA+4*T}:{OA+3+4*T}], v[{bb+4+4*T}:{bb+7+4*T}], v[{bb}:{bb+3}], {c}')
    st(6)
    e.I('v_lshrrev_b32 v20, 4, v12')
    e.I('v_mul_u32_u24 v20, %d, v20' % (18 * 1024))
    e.I('v_lshl_add_u32 v20, v2, 4, v20')
    e.I('s_mul_i32 s57, s25, 72')
    e.I('s_mul_i32 s56, s53, 48')
    e.I('s_add_u32 s57, s57, s56')
    e.I('v_lshl_add_u32 v21, v3, 2, s57')
    e.I('v_bfe_u32 v22, v21, 2, 2')
    e.I('v_lshl_add_u32 v20, v22, 8, v20')
    e.I('v_lshrrev_b32 v21, 4, v21')
    for T in range(3):
        e.I(f'v_add_u32 v22, {T}, v21')
        e.I('v_lshrrev_b32 v39, 1, v22')
        e.I(f'v_lshl_add_u32 v{51+T}, v39, 10, v20')
        e.I('v_and_b32 v22, 1, v22')
        e.I(f'v_lshl_add_u32 v{51+T}, v22, 3, v{51+T}')
    e.I('v_lshl_add_u32 v23, v3, 2, s56')
    e.I('v_mov_b32 v30, 0')
    e.I('v_mov_b32 v31, 0')
    e.I('v_mov_b32 v28, 0x3f803f80')
    e.I('s_waitcnt vmcnt(%d)' % (2 if pfup else 1))
    for T in range(3):
        a = OA + 4 * T
        x = XR + 2 * T
        e.I(f'v_lshlrev_b32 v24, 16, v{x}')
        e.I(f'v_and_b32 v25, 0xffff0000, v{x}')
        e.I(f'v_lshlrev_b32 v26, 16, v{x+1}')
        e.I(f'v_and_b32 v27, 0xffff0000, v{x+1}')
        e.I(f'v_cmp_gt_u32 vcc, {72 - 16*T}, v23')
        for c in range(4):
            e.I(f'v_add_f32 v{a+c}, v{a+c}, v{24+c}')
        e.I(f'v_cvt_pk_bf16_f32 v{a}, v{a}, v{a+1}')
        e.I(f'v_cvt_pk_bf16_f32 v{a+1}, v{a+2}, v{a+3}')
        e.I(f'v_cndmask_b32 v{32+T}, v6, v{51+T}, vcc')
        e.V(f'buffer_store_dwordx2 v[{a}:{a+1}], v{32+T}, s[36:39], 0 offen', ('st', T))
        e.I(f'v_cndmask_b32 v{a+2}, 0, v{a}, vcc')
        e.I(f'v_cndmask_b32 v{a+3}, 0, v{a+1}, vcc')
        e.I(f'v_dot2_f32_bf16 v30, v{a+2}, v28, v30')
        e.I(f'v_dot2_f32_bf16 v31, v{a+2}, v{a+2}, v31')
        e.I(f'v_dot2_f32_bf16 v30, v{a+3}, v28, v30')
        e.I(f'v_dot2_f32_bf16 v31, v{a+3}, v{a+3}, v31')
    for sw in ('v_permlane16_swap_b32', 'v_permlane32_swap_b32'):
        e.I('v_mov_b32 v36, v30')
        e.I('v_mov_b32 v37, v31')
        e.I(f'{sw} v30, v36')
        e.I(f'{sw} v31, v37')
        e.I('v_add_f32 v30, v30, v36')
        e.I('v_add_f32 v31, v31, v37')
    e.I('v_lshrrev_b32 v38, 4, v12')
    e.I('v_lshlrev_b32 v38, 11, v38')
    e.I('v_lshl_add_u32 v38, v2, 4, v38')
    e.I('s_and_b32 s54, s25, 1')
    e.I('s_lshl_b32 s54, s54, 10')
    e.I('s_lshr_b32 s56, s25, 1')
    e.I('s_lshl_b32 s56, s56, 8')
    e.I('s_add_u32 s54, s54, s56')
    e.I('s_lshl_b32 s56, s53, 3')
    e.I('s_add_u32 s54, s54, s56')
    e.I('v_add_u32 v38, s54, v38')
    e.I('v_cndmask_b32 v38, v6, v38, s[58:59]')
    e.V('buffer_store_dwordx2 v[30:31], v38, s[40:43], 0 offen', ('st', 9))
    st.dump()
    e.label('L_k2_done')
    e.I('s_endpgm')
    return e.finalize() + kd(name, 224, 224)

for l in range(64):
    assert (l * 57) >> 9 == l // 9
```

```python
from asmlib import Em, Ins
from common import *

SUB = 9216
SLOT = 2 * SUB + 64
NSLOT = 8
K3_LDS = SLOT * NSLOT
NF = 8
XR = 32
XN = 48
GB = 64
FB = 224

def gu_reg(T, mt, isu):
    blk, o = T // 2, ((T % 2) * 2 + mt) * 8 + isu * 4
    return ('v', GB + 32 * blk + o) if blk < 6 else ('a', 32 * (blk - 6) + o)
def hh_reg(sp, mt):
    return GB + 8 * sp + 4 * mt
def out_reg(hf, T, mt):
    P, o = T // 2, mt * 8 + (T % 2) * 4
    if hf == 0:
        return ('a', 96 + 16 * P + o) if P < 8 else ('v', XR + o)
    if P < 7:
        return ('v', GB + 80 + 16 * P + o)
    return ('v', XN + o) if P == 7 else ('a', o)
def q4(kb):
    return f'{kb[0]}[{kb[1]}:{kb[1]+3}]'

class Task:
    def __init__(self, ops, ready, deadline):
        self.ops = list(ops); self.ready = ready; self.deadline = deadline

def gen_k3(name='ffn_kernel', D=6, budgetA=2, budgetB=4, budgetC=2, stamps=False, loop=True, LSTART=5, LITER=5, stflag=' sc0 sc1', fuse=False):
    e = Em()
    st = Stamps(e, stamps, 2)
    e.raw(head(name))
    e.I('s_cmp_ge_u32 s2, 256')
    e.I('s_cbranch_scc1 L_k3_done')
    st(0)
    e.I('s_load_dwordx4 s[4:7], s[0:1], 32')
    e.I('s_load_dwordx2 s[28:29], s[0:1], 48')
    e.I('s_load_dwordx2 s[30:31], s[0:1], 72')
    e.I('v_lshrrev_b32 v1, 6, v0')
    e.I('v_readfirstlane_b32 s3, v1')
    e.I('v_and_b32 v1, 63, v0')
    e.I('s_and_b32 s24, s2, 7')
    e.I('s_lshl_b32 s24, s24, 1')
    e.I('s_bfe_u32 s25, s2, 0x10003')
    e.I('s_add_u32 s24, s24, s25')
    e.I('s_lshr_b32 s25, s2, 4')
    e.I('s_mov_b32 s34, -1')
    e.I('s_mov_b32 s35, 0')
    e.I('s_and_b32 s36, s3, 1')
    e.I('s_lshr_b32 s37, s3, 1')
    e.I('s_mul_i32 s26, s3, 4608')
    e.I('s_mul_i32 s38, s36, %d' % (16 * 9216))
    e.I('s_mul_i32 s39, s24, 576')
    e.I('s_add_u32 s38, s38, s39')
    e.I('s_mul_i32 s39, s36, %d' % (16 * 1152))
    e.I('s_mul_i32 s40, s24, %d' % (288 * 1152))
    e.I('s_add_u32 s39, s39, s40')
    e.I('s_mul_i32 s40, s37, 288')
    e.I('s_add_u32 s39, s39, s40')
    e.I('s_movk_i32 s41, 9216')
    e.I('s_movk_i32 s42, 1152')
    e.I('s_lshl_b32 s43, s25, 2')
    e.I('s_add_u32 s43, s43, s3')
    e.I('s_mul_i32 s44, s43, %d' % (36 * 1024))
    e.I('v_lshlrev_b32 v18, 4, v1')
    e.I('v_add_u32 v18, s44, v18')
    e.I(f'v_add_u32 v19, {18*1024}, v18')
    e.I('s_lshl_b32 s45, s43, 12')
    e.I('v_lshl_add_u32 v22, v1, 4, s45')
    for j in range(5):
        e.I(f'v_add_u32 v24, {64*j}, v1')
        e.I('v_mul_u32_u24 v25, 3641, v24')
        e.I('v_lshrrev_b32 v25, 16, v25')
        e.I('v_mul_u32_u24 v26, 18, v25')
        e.I('v_sub_u32 v26, v24, v26')
        e.I('v_lshlrev_b32 v26, 4, v26')
        jo = 1024 * min(j, 3)
        if jo:
            e.I(f'v_subrev_u32 v26, {jo}, v26')
        e.I(f'v_mad_u32_u24 v{2+j}, v25, s41, v26')
        e.I(f'v_add_u32 v{2+j}, s38, v{2+j}')
        e.I(f'v_mad_u32_u24 v{7+j}, v25, s42, v26')
        e.I(f'v_add_u32 v{7+j}, s39, v{7+j}')
    e.I('s_waitcnt lgkmcnt(0)')
    e.I('s_cmp_eq_u32 s37, 0')
    e.I('s_cselect_b32 s8, s4, s6')
    e.I('s_cselect_b32 s9, s5, s7')
    e.I('s_and_b32 s9, s9, 0xffff')
    e.I('s_mov_b32 s10, %d' % (576 * 4608 * 2))
    e.I('s_mov_b32 s11, 0x00020000')
    srd_off(e, 48, 30, 31, WS_STATS, STATS_BYTES)
    srd_off(e, 16, 30, 31, WS_H, ACT_BYTES)
    for j in range(4):
        e.V(f'buffer_load_dwordx4 v[{GB+4*j}:{GB+4*j+3}], v22, s[48:51], 0 offen offset:{1024*j}', 'stat')
    e.I('s_mov_b32 s32, 0')
    e.I('s_mov_b32 s47, 0')
    e.I('s_mov_b32 s52, s26')
    e.I('s_lshl_b32 s53, s26, 1')
    e.I(f's_add_u32 s53, s53, {4*SLOT}')
    e.I(f's_mov_b32 s54, {4*SLOT}')
    e.I('s_mov_b32 s46, 0xffff0000')

    units = []
    for s in range(16):
        units += [('A', s, 0), ('A', s, 1)]
    units += [('A', 16, 0), ('A', 17, 0), ('A', 16, 1), ('A', 17, 1)]
    for hf in range(2):
        for sp in range(9):
            units.append(('B', sp, hf))
    NU = 54
    def dma_ops(u):
        ph, s, x = units[u]
        ops = []
        p = u % 4
        if p == 0 and u > 0:
            ops.append(('I', 's_sub_u32 s52, s53, s52'))
        ops.append(('I', f's_add_u32 m0, s52, {p*SLOT}'))
        if ph == 'A':
            vb, sr = 2, 8
            if u >= 32:
                ops.append(('I', f's_mov_b32 s32, {s*32*9216 + x*288}'))
        else:
            vb, sr = 7, 12
            ops.append(('I', f's_mov_b32 s32, {s*32*1152 + x*576}'))
        for j in range(4):
            ops.append(('V', f'buffer_load_dwordx4 v{vb+j}, s[{sr}:{sr+3}], s32 offen offset:{1024*j} lds', ('dma', u)))
        ops.append(('I', 's_add_u32 m0, m0, 0x400'))
        ops.append(('X', f'buffer_load_dwordx4 v{vb+4}, s[{sr}:{sr+3}], s32 offen offset:3072 lds', ('dma', u)))
        if u < 32:
            ops.append(('I', f's_add_u32 s32, s32, {288 if x == 0 else 32*9216 - 288}'))
        return ops
    def xload_ops(s):
        r = XR + 8 * (s % 2)
        return [('V', f'buffer_load_dwordx4 v[{r}:{r+3}], v18, s[16:19], s47 offen', ('x', s)),
                ('V', f'buffer_load_dwordx4 v[{r+4}:{r+7}], v19, s[16:19], s47 offen', ('x', s)),
                ('I', 's_add_u32 s47, s47, 0x400')]
    def emit_op(op):
        if op[0] == 'I':
            e.I(op[1])
        elif op[0] == 'V':
            e.V(op[1], op[2])
        elif op[0] == 'W':
            e.wait_vm(op[1])
        elif op[0] == 'X':
            e.I('s_mov_b64 exec, s[34:35]')
            e.V(op[1], op[2])
            e.I('s_mov_b64 exec, -1')
    def norm_ops(s):
        ops = [('W', ('x', s))]
        for j in range(8):
            r = XR + 8 * (s % 2) + j
            d = XN + 8 * (s % 2) + j
            rs_, nb_ = (20, 21) if j < 4 else (16, 17)
            a, b = (24, 25) if j % 2 == 0 else (26, 27)
            ops.append(('I', f'v_lshlrev_b32 v{a}, 16, v{r}'))
            ops.append(('I', f'v_and_b32 v{b}, s46, v{r}'))
            ops.append(('I', f'v_fma_f32 v{a}, v{a}, v{rs_}, v{nb_}'))
            ops.append(('I', f'v_fma_f32 v{b}, v{b}, v{rs_}, v{nb_}'))
            ops.append(('I', f'v_cvt_pk_bf16_f32 v{d}, v{a}, v{b}'))
        return ops

    for u in range(6):
        if u in (0, 2):
            for op in xload_ops(u // 2):
                emit_op(op)
        for op in dma_ops(u):
            emit_op(op)
        if u == 0:
            srd(e, 12, 28, 29, 4608 * 576 * 2)
            e.I('s_mul_i32 s45, s24, %d' % ACT_BYTES)
            e.I('s_add_u32 s45, s45, %d' % WS_P)
            srd_off(e, 20, 30, 31, 's45', ACT_BYTES)
    st(1)
    e.I('v_and_b32 v24, 3, v1')
    e.I('v_lshrrev_b32 v25, 2, v1')
    e.I('v_mul_u32_u24 v25, 288, v25')
    e.I('v_lshl_add_u32 v12, v24, 3, v25')
    e.I(f'v_add_u32 v13, {2*SLOT}, v12')
    e.wait_vm('stat')
    G = GB
    for b in (G, G + 8):
        e.I(f'v_add_f32 v{b}, v{b}, v{b+2}');  e.I(f'v_add_f32 v{b+1}, v{b+1}, v{b+3}')
        e.I(f'v_add_f32 v{b+4}, v{b+4}, v{b+6}');  e.I(f'v_add_f32 v{b+5}, v{b+5}, v{b+7}')
        e.I(f'v_add_f32 v{b}, v{b}, v{b+4}');  e.I(f'v_add_f32 v{b+1}, v{b+1}, v{b+5}')
    for sw in ('v_permlane16_swap_b32', 'v_permlane32_swap_b32'):
        for b in (G, G + 8):
            e.I(f'v_mov_b32 v{b+2}, v{b}'); e.I(f'v_mov_b32 v{b+3}, v{b+1}')
        for b in (G, G + 8):
            e.I(f'{sw} v{b}, v{b+2}'); e.I(f'{sw} v{b+1}, v{b+3}')
        for b in (G, G + 8):
            e.I(f'v_add_f32 v{b}, v{b}, v{b+2}');  e.I(f'v_add_f32 v{b+1}, v{b+1}, v{b+3}')
    inv = 0x3ae38e39
    for b, rs_, nb_ in ((G, 20, 21), (G + 8, 16, 17)):
        e.I(f'v_mul_f32 v{b}, {inv:#x}, v{b}')
        e.I(f'v_mul_f32 v{b+1}, {inv:#x}, v{b+1}')
        e.I(f'v_fma_f32 v{b+1}, -v{b}, v{b}, v{b+1}')
        e.I(f'v_max_f32 v{b+1}, 0, v{b+1}')
        e.I(f'v_add_f32 v{b+1}, 0x3727c5ac, v{b+1}')
        e.I(f'v_rsq_f32 v{rs_}, v{b+1}')
        e.I(f'v_mul_f32 v{rs_}, {NLOG2E:#x}, v{rs_}')
        e.I(f'v_mul_f32 v{nb_}, v{b}, v{rs_}')
        e.I(f'v_sub_f32 v{nb_}, 0, v{nb_}')
    for op in norm_ops(0):
        emit_op(op)
    st(2)

    sl = []
    for u, (ph, s, x) in enumerate(units):
        for k in range(18):
            if ph == 'A':
                t9, isu = k // 2, k % 2
                sl.append(dict(u=u, ph='A', s=s, T=9 * x + t9, isu=isu, off=isu * SUB + 32 * t9))
            else:
                sl.append(dict(u=u, ph='B', s=s, hf=x, T=k, off=(k // 9) * SUB + 32 * (k % 9)))
    NM = len(sl)
    first_rd = {u: 18 * u for u in range(NU)}
    last_rd = {u: 18 * u + 17 for u in range(NU)}
    lastA, lastB, firstS, firstX, lastX = {}, {}, {}, {}, {}
    for i, m in enumerate(sl):
        if m['ph'] == 'A':
            lastA[m['T'] // 2] = i
            firstX.setdefault(m['s'], i); lastX[m['s']] = i
        else:
            lastB[(m['hf'], m['T'] // 2)] = i
            if m['hf'] == 0:
                firstS.setdefault(m['s'], i)
    cur_par = [0]
    def rd(i, half):
        m = sl[i]
        f = FB + 4 * (i % NF) + 2 * half
        u = m['u']
        if half == 0:
            par = (u // 4) & 1
            if par != cur_par[0]:
                e.I('v_add_u32 v12, s54, v12')
                e.I('v_add_u32 v13, s54, v13')
                e.I('s_sub_u32 s54, 0, s54')
                cur_par[0] = par
        base = 12 + (u % 4) // 2
        o = (u % 2) * SLOT + m['off'] + half * 16 * 288
        e.L(f'ds_read_b64_tr_b16 a[{f}:{f+1}], v{base} offset:{o}', ('f', i))

    tasks = []
    for s in range(1, 18):
        rdy = max(firstX[s] - 36, lastX.get(s - 2, -1) + 1, 0)
        ops = norm_ops(s)
        if s + 2 < 18:
            ops = ops + xload_ops(s + 2)
        tasks.append(Task(ops, rdy, firstX[s]))
    tasks.append(Task(xload_ops(2), 0, 4))
    def glu_ops(sp):
        ops = []
        for mt in range(2):
            for tt in range(2):
                T = 2 * sp + tt
                kg, g = gu_reg(T, mt, 0)
                ku, u_ = gu_reg(T, mt, 1)
                Tm = [24, 25, 26, 27]
                if kg == 'a':
                    for c in range(4):
                        ops.append(f'v_accvgpr_read_b32 v{Tm[c]}, a{g+c}')
                    for c in range(4):
                        ops.append(f'v_accvgpr_read_b32 v{28+c}, a{u_+c}')
                    g, u_ = 24, 28
                for c in range(4):
                    ops.append(f'v_exp_f32 v{Tm[c]}, v{g+c}')
                for c in (0, 2):
                    ops.append(f'v_pk_add_f32 v[{Tm[c]}:{Tm[c]+1}], v[{Tm[c]}:{Tm[c]+1}], 1.0 op_sel_hi:[1,0]')
                for c in range(4):
                    ops.append(f'v_rcp_f32 v{Tm[c]}, v{Tm[c]}')
                for c in (0, 2):
                    ops.append(f'v_pk_mul_f32 v[{Tm[c]}:{Tm[c]+1}], v[{Tm[c]}:{Tm[c]+1}], v[{u_+c}:{u_+c+1}]')
                h = hh_reg(sp, mt) + 2 * tt
                if sp == 0:
                    h = (14, 22)[0] if False else None
                ops.append(('cvt', sp, mt, tt))
        return ops
    def glu_final(sp):
        out = []
        for op in glu_ops(sp):
            if isinstance(op, tuple):
                _, sp_, mt, tt = op
                h = hh_reg(sp_, mt) + 2 * tt
                out.append(('I', f'v_cvt_pk_bf16_f32 v{h}, v24, v25'))
                out.append(('I', f'v_cvt_pk_bf16_f32 v{h+1}, v26, v27'))
            else:
                out.append(('I', op))
        return out
    for sp in range(9):
        tasks.append(Task(glu_final(sp), lastA[sp] + 3, firstS[sp]))
    def store_ops(hf, P):
        ops = []
        for mt in range(2):
            kind, r = out_reg(hf, 2 * P, mt)
            if kind == 'a':
                for c in range(8):
                    ops.append(('I', f'v_accvgpr_read_b32 v{24+c}, a{r+c}'))
                r = 24
            for c in range(4):
                ops.append(('I', f'v_cvt_pk_bf16_f32 v{r+c}, v{r+2*c}, v{r+2*c+1}'))
            ops.append(('I', f's_mov_b32 s33, {(hf*9+P)*1024}'))
            ops.append(('V', f'buffer_store_dwordx4 v[{r}:{r+3}], v{18+mt}, s[20:23], s33 offen{stflag}', ('st', hf, P, mt)))
        return ops
    for P in range(9):
        tasks.append(Task(store_ops(0, P), lastB[(0, P)] + 3, NM - 40 + P))
    for P in range(9):
        tasks.append(Task(store_ops(1, P), lastB[(1, P)] + 3, NM + P))

    dma_q = []
    next_dma = [6]
    active = [None]
    def run_fillers(i, budget, force_only=False):
        n = 0
        while dma_q and n < 1 and not force_only:
            op = dma_q.pop(0)
            emit_op(op)
            budget -= 1
            if op[0] in 'VX':
                n += 1
        while True:
            forced = [tk for tk in tasks if tk.ops and tk.deadline <= i]
            tk = active[0] if active[0] is not None and active[0].ops else None
            if tk is None:
                cand = sorted([t_ for t_ in tasks if t_.ops and t_.ready <= i], key=lambda t_: t_.deadline)
                if not cand:
                    assert not forced
                    return
                tk = cand[0]
                active[0] = tk
            if budget <= 0 and not forced:
                return
            emit_op(tk.ops.pop(0)); budget -= 1
    def barrier_for(u, i):
        while dma_q:
            emit_op(dma_q.pop(0))
        e.wait_vm(('dma', u))
        e.I('s_barrier')
        while next_dma[0] < NU and (next_dma[0] < 8 or last_rd[next_dma[0] - 8] <= i - 1):
            dma_q.extend(dma_ops(next_dma[0])); next_dma[0] += 1

    barrier_for(0, 0)
    for i in range(D):
        rd(i, 0); rd(i, 1)
    L0, LN_IT = LSTART * 18, LITER
    for i in range(NM):
        m = sl[i]
        if loop and i >= L0 and (i - L0) % 72 == 0 and (i - L0) // 72 <= LN_IT:
            k = (i - L0) // 72
            if k > 0:
                e.I('s_sub_u32 s55, s55, 1')
                e.I('s_cbranch_scc1 L_k3_loop')
            else:
                e.I(f's_mov_b32 s55, {LN_IT - 1}')
                st(7)
            e.raw(f';@ITER {k}')
            if k == LN_IT:
                st(8)
        if i in (first_rd[32], first_rd[36], first_rd[45]):
            st({first_rd[32]: 3, first_rd[36]: 4, first_rd[45]: 5}[i])
        run_fillers(i, 0, force_only=True)
        j = i + D
        if j < NM:
            if j % 18 == 0:
                barrier_for(j // 18, i)
            rd(j, 0)
        if i % 2 == 0:
            e.wait_lg(('f', min(i + 1, NM - 1)))
        f = FB + 4 * (i % NF)
        def mf(mt):
            if m['ph'] == 'A':
                acc = q4(gu_reg(m['T'], mt, m['isu']))
                b = XN + 8 * (m['s'] % 2) + 4 * mt
            else:
                acc = q4(out_reg(m['hf'], m['T'], mt))
                b = hh_reg(m['s'], mt)
            c = acc if m['s'] > 0 else '0'
            e.I(f'v_mfma_f32_16x16x32_bf16 {acc}, a[{f}:{f+3}], v[{b}:{b+3}], {c}')
        mf(0)
        if j < NM:
            rd(j, 1)
        bud = budgetA if i < first_rd[34] + 4 else (budgetB if i < first_rd[45] or i > NM - 20 else budgetC)
        run_fillers(i, bud)
        mf(1)
    st(6)
    run_fillers(NM + 100, 10000)
    st.dump()
    e.label('L_k3_done')
    e.I('s_endpgm')
    txt = e.finalize()
    if loop:
        lines = txt.split('\n')
        idx = [n for n, l in enumerate(lines) if l.startswith(';@ITER')]
        segs = [lines[idx[k] + 1: idx[k + 1]] for k in range(LN_IT)]
        for k in range(1, LN_IT):
            if segs[k] != segs[0]:
                for a, b in zip(segs[0], segs[k]):
                    if a != b:
                        raise Exception(f'loop body mismatch iter {k}: {a} | {b}')
                raise Exception(f'loop body length mismatch iter {k}')
        body = list(segs[0])
        assert body[-1].strip() == 's_cbranch_scc1 L_k3_loop'
        body[-1] = '    s_cbranch_scc0 L_k3_loop'
        lines = lines[:idx[0]] + ['L_k3_loop:'] + body + lines[idx[LN_IT] + 1:]
        txt = '\n'.join(lines)
    return txt + kd(name, 512, 256)


def gen_k4(name='red_kernel', scale=0xbf317218):
    e = Em()
    e.raw(head(name))
    e.I('s_cmp_ge_u32 s2, 256')
    e.I('s_cbranch_scc1 L_k4_done')
    e.I('s_load_dwordx2 s[4:5], s[0:1], 56')
    e.I('s_load_dwordx2 s[6:7], s[0:1], 72')
    e.I('v_lshrrev_b32 v1, 6, v0')
    e.I('v_readfirstlane_b32 s3, v1')
    e.I('v_and_b32 v1, 63, v0')
    e.I('s_mul_i32 s20, s2, 9')
    e.I('s_add_u32 s20, s20, s3')
    e.I('s_mul_i32 s21, s20, 3641')
    e.I('s_lshr_b32 s21, s21, 16')
    e.I('s_mul_i32 s22, s21, 18')
    e.I('s_sub_u32 s22, s20, s22')
    e.I('s_lshl_b32 s23, s20, 10')
    e.I('v_lshl_add_u32 v2, v1, 4, s23')
    e.I('s_lshl_b32 s24, s21, 4')
    e.I('v_and_b32 v3, 15, v1')
    e.I('v_add_u32 v3, s24, v3')
    e.I('v_mul_u32_u24 v3, 1152, v3')
    e.I('v_lshrrev_b32 v4, 4, v1')
    e.I('v_lshl_add_u32 v3, v4, 3, v3')
    e.I('s_lshl_b32 s25, s22, 6')
    e.I('v_add_u32 v3, s25, v3')
    e.I('s_mov_b32 s27, 0xffff0000')
    e.I('s_waitcnt lgkmcnt(0)')
    srd_off(e, 16, 6, 7, WS_P, 16 * ACT_BYTES)
    e.I('s_mov_b32 s26, 0')
    for j in range(16):
        e.V(f'buffer_load_dwordx4 v[{12+4*j}:{15+4*j}], v2, s[16:19], s26 offen', ('p', j))
        if j < 15:
            e.I(f's_add_u32 s26, s26, {ACT_BYTES}')
    srd_off(e, 12, 6, 7, WS_H, ACT_BYTES)
    e.V('buffer_load_dwordx4 v[8:11], v2, s[12:15], 0 offen', 'h')
    srd(e, 8, 4, 5, ACT_BYTES)
    for j in range(16):
        e.wait_vm(('p', j))
        for c in range(4):
            r = 12 + 4 * j + c
            if j == 0:
                e.I(f'v_lshlrev_b32 v{80+2*c}, 16, v{r}')
                e.I(f'v_and_b32 v{81+2*c}, s27, v{r}')
            else:
                t = 88 + 2 * (c % 2)
                e.I(f'v_lshlrev_b32 v{t}, 16, v{r}')
                e.I(f'v_and_b32 v{t+1}, s27, v{r}')
                e.I(f'v_pk_add_f32 v[{80+2*c}:{81+2*c}], v[{80+2*c}:{81+2*c}], v[{t}:{t+1}]')
    e.I(f'v_mov_b32 v94, {scale:#x}')
    e.wait_vm('h')
    for c in range(4):
        t = 88 + 2 * (c % 2)
        e.I(f'v_lshlrev_b32 v{t}, 16, v{8+c}')
        e.I(f'v_and_b32 v{t+1}, s27, v{8+c}')
        e.I(f'v_fma_f32 v{80+2*c}, v{80+2*c}, v94, v{t}')
        e.I(f'v_fma_f32 v{81+2*c}, v{81+2*c}, v94, v{t+1}')
    for c in range(4):
        e.I(f'v_cvt_pk_bf16_f32 v{12+c}, v{80+2*c}, v{81+2*c}')
    e.V('buffer_store_dwordx2 v[12:13], v3, s[8:11], 0 offen', 'st')
    e.V('buffer_store_dwordx2 v[14:15], v3, s[8:11], 0 offen offset:32', 'st')
    e.label('L_k4_done')
    e.I('s_endpgm')
    return e.finalize() + kd(name, 96, 96)

for g in range(2304):
    assert (g * 3641) >> 16 == g // 18, g
```

```python
from asmlib import Em, Ins
from common import *

import os
PADV = os.environ.get('K3PAD', '0') == '1'
WREG = 5120 if PADV else 4608
SUB = 2 * WREG
SLOT = 2 * SUB + (0 if PADV else 64)
NSLOT = 8
K3_LDS = SLOT * NSLOT
NF = 8
XR = 32
XN = 48
GB = 64
FB = 224

def gu_reg(T, mt, isu):
    blk, o = T // 2, ((T % 2) * 2 + mt) * 8 + isu * 4
    return ('v', GB + 32 * blk + o) if blk < 6 else ('a', 32 * (blk - 6) + o)
def hh_reg(sp, mt):
    return GB + 8 * sp + 4 * mt
def out_reg(hf, T, mt):
    P, o = T // 2, mt * 8 + (T % 2) * 4
    if hf == 0:
        return ('a', 96 + 16 * P + o) if P < 8 else ('v', XR + o)
    if P < 7:
        return ('v', GB + 80 + 16 * P + o)
    return ('v', XN + o) if P == 7 else ('a', o)
def q4(kb):
    return f'{kb[0]}[{kb[1]}:{kb[1]+3}]'

class Task:
    def __init__(self, ops, ready, deadline):
        self.ops = list(ops); self.ready = ready; self.deadline = deadline

def gen_k3(name='ffn_kernel', D=6, budgetA=2, budgetB=4, budgetC=2, stamps=False, loop=True, LSTART=5, LITER=5, stflag=' sc0 sc1', fuse=False, pkn=False, split=False, PRO=3):
    e = Em()
    st = Stamps(e, stamps, 2)
    e.raw(head(name))
    e.I('s_cmp_ge_u32 s2, 256')
    e.I('s_cbranch_scc1 L_k3_done')
    st(0)
    e.I('s_load_dwordx4 s[4:7], s[0:1], 32')
    e.I('s_load_dwordx2 s[28:29], s[0:1], 48')
    e.I('s_load_dwordx2 s[30:31], s[0:1], 72')
    e.I('v_lshrrev_b32 v1, 6, v0')
    e.I('v_readfirstlane_b32 s3, v1')
    e.I('v_and_b32 v1, 63, v0')
    e.I('s_and_b32 s24, s2, 7')
    e.I('s_lshl_b32 s24, s24, 1')
    e.I('s_bfe_u32 s25, s2, 0x10003')
    e.I('s_add_u32 s24, s24, s25')
    e.I('s_lshr_b32 s25, s2, 4')
    e.I('s_mov_b32 s34, -1')
    e.I('s_mov_b32 s35, 0')
    e.I('s_and_b32 s36, s3, 1')
    e.I('s_lshr_b32 s37, s3, 1')
    e.I(f's_mul_i32 s26, s3, {WREG}')
    e.I('s_mul_i32 s38, s36, %d' % (16 * 9216))
    e.I('s_mul_i32 s39, s24, 576')
    e.I('s_add_u32 s38, s38, s39')
    e.I('s_mul_i32 s39, s36, %d' % (16 * 1152))
    e.I('s_mul_i32 s40, s24, %d' % (288 * 1152))
    e.I('s_add_u32 s39, s39, s40')
    e.I('s_mul_i32 s40, s37, 288')
    e.I('s_add_u32 s39, s39, s40')
    e.I('s_movk_i32 s41, 9216')
    e.I('s_movk_i32 s42, 1152')
    e.I('s_lshl_b32 s43, s25, 2')
    e.I('s_add_u32 s43, s43, s3')
    e.I('s_mul_i32 s44, s43, %d' % (36 * 1024))
    e.I('v_lshlrev_b32 v18, 4, v1')
    e.I('v_add_u32 v18, s44, v18')
    e.I(f'v_add_u32 v19, {18*1024}, v18')
    e.I('s_lshl_b32 s45, s43, 12')
    e.I('v_lshl_add_u32 v22, v1, 4, s45')
    for j in range(5):
        e.I(f'v_add_u32 v24, {64*j}, v1')
        e.I('v_mul_u32_u24 v25, 3641, v24')
        e.I('v_lshrrev_b32 v25, 16, v25')
        e.I('v_mul_u32_u24 v26, 18, v25')
        e.I('v_sub_u32 v26, v24, v26')
        e.I('v_lshlrev_b32 v26, 4, v26')
        jo = 1024 * min(j, 3)
        if jo:
            e.I(f'v_subrev_u32 v26, {jo}, v26')
        e.I(f'v_mad_u32_u24 v{2+j}, v25, s41, v26')
        e.I(f'v_add_u32 v{2+j}, s38, v{2+j}')
        e.I(f'v_mad_u32_u24 v{7+j}, v25, s42, v26')
        e.I(f'v_add_u32 v{7+j}, s39, v{7+j}')
    e.I('v_cmp_gt_u32 vcc, 32, v1')
    e.I(f'v_mov_b32 v24, {OOB}')
    e.I('v_cndmask_b32 v6, v24, v6, vcc')
    e.I('v_cndmask_b32 v11, v24, v11, vcc')
    e.I('s_waitcnt lgkmcnt(0)')
    e.I('s_cmp_eq_u32 s37, 0')
    e.I('s_cselect_b32 s8, s4, s6')
    e.I('s_cselect_b32 s9, s5, s7')
    e.I('s_and_b32 s9, s9, 0xffff')
    e.I('s_mov_b32 s10, %d' % (576 * 4608 * 2))
    e.I('s_mov_b32 s11, 0x00020000')
    srd_off(e, 48, 30, 31, WS_STATS, STATS_BYTES)
    srd_off(e, 16, 30, 31, WS_H, ACT_BYTES)
    for j in range(4):
        e.V(f'buffer_load_dwordx4 v[{GB+4*j}:{GB+4*j+3}], v22, s[48:51], 0 offen offset:{1024*j}', 'stat')
    e.I('s_mov_b32 s32, 0')
    e.I('s_mov_b32 s47, 0')
    e.I('s_mov_b32 s52, s26')
    e.I('s_lshl_b32 s53, s26, 1')
    e.I(f's_add_u32 s53, s53, {4*SLOT}')
    e.I(f's_mov_b32 s54, {4*SLOT}')
    e.I('s_mov_b32 s46, 0xffff0000')

    units = []
    for s in range(16):
        units += [('A', s, 0), ('A', s, 1)]
    units += [('A', 16, 0), ('A', 17, 0), ('A', 16, 1), ('A', 17, 1)]
    for hf in range(2):
        for sp in range(9):
            units.append(('B', sp, hf))
    NU = 54
    def dma_ops(u):
        ph, s, x = units[u]
        ops = []
        p = u % 4
        if p == 0 and u > 0:
            ops.append(('I', 's_sub_u32 s52, s53, s52'))
        ops.append(('I', f's_add_u32 m0, s52, {p*SLOT}'))
        if ph == 'A':
            vb, sr = 2, 8
            if u >= 32:
                ops.append(('I', f's_mov_b32 s32, {s*32*9216 + x*288}'))
        else:
            vb, sr = 7, 12
            ops.append(('I', f's_mov_b32 s32, {s*32*1152 + x*576}'))
        for j in range(4):
            ops.append(('V', f'buffer_load_dwordx4 v{vb+j}, s[{sr}:{sr+3}], s32 offen offset:{1024*j} lds', ('dma', u)))
        ops.append(('I', 's_add_u32 m0, m0, 0x400'))
        ops.append(('V' if PADV else 'X', f'buffer_load_dwordx4 v{vb+4}, s[{sr}:{sr+3}], s32 offen offset:3072 lds', ('dma', u)))
        if u < 32:
            ops.append(('I', f's_add_u32 s32, s32, {288 if x == 0 else 32*9216 - 288}'))
        return ops
    def xload_ops(s):
        r = XR + 8 * (s % 2)
        return [('V', f'buffer_load_dwordx4 v[{r}:{r+3}], v18, s[16:19], s47 offen', ('x', s)),
                ('V', f'buffer_load_dwordx4 v[{r+4}:{r+7}], v19, s[16:19], s47 offen', ('x', s)),
                ('I', 's_add_u32 s47, s47, 0x400')]
    def emit_op(op):
        if op[0] == 'I':
            e.I(op[1])
        elif op[0] == 'V':
            e.V(op[1], op[2])
        elif op[0] == 'W':
            e.wait_vm(op[1])
        elif op[0] == 'X':
            e.I('s_mov_b64 exec, s[34:35]')
            e.V(op[1], op[2])
            e.I('s_mov_b64 exec, -1')
    def norm_ops(s):
        ops = [('W', ('x', s))]
        for j in range(8):
            r = XR + 8 * (s % 2) + j
            d = XN + 8 * (s % 2) + j
            rs_, nb_ = (20, 22) if j < 4 else (14, 16)
            a, b = (24, 25) if j % 2 == 0 else (26, 27)
            ops.append(('I', f'v_lshlrev_b32 v{a}, 16, v{r}'))
            ops.append(('I', f'v_and_b32 v{b}, s46, v{r}'))
            if pkn:
                ops.append(('I', f'v_pk_fma_f32 v[{a}:{b}], v[{a}:{b}], v[{rs_}:{rs_+1}], v[{nb_}:{nb_+1}]'))
            else:
                ops.append(('I', f'v_fma_f32 v{a}, v{a}, v{rs_}, v{nb_}'))
                ops.append(('I', f'v_fma_f32 v{b}, v{b}, v{rs_}, v{nb_}'))
            ops.append(('I', f'v_cvt_pk_bf16_f32 v{d}, v{a}, v{b}'))
        return ops

    for u in range(PRO):
        if u in (0, 2):
            for op in xload_ops(u // 2):
                emit_op(op)
        for op in dma_ops(u):
            emit_op(op)
        if u == 0:
            srd(e, 12, 28, 29, 4608 * 576 * 2)
            e.I('s_mul_i32 s45, s24, %d' % ACT_BYTES)
            e.I('s_add_u32 s45, s45, %d' % WS_P)
            srd_off(e, 20, 30, 31, 's45', ACT_BYTES)
    st(1)
    e.I('v_and_b32 v24, 3, v1')
    e.I('v_lshrrev_b32 v25, 2, v1')
    e.I('v_mul_u32_u24 v25, 288, v25')
    e.I('v_lshl_add_u32 v12, v24, 3, v25')
    e.I(f'v_add_u32 v13, {2*SLOT}, v12')
    e.wait_vm('stat')
    G = GB
    for b in (G, G + 8):
        e.I(f'v_add_f32 v{b}, v{b}, v{b+2}');  e.I(f'v_add_f32 v{b+1}, v{b+1}, v{b+3}')
        e.I(f'v_add_f32 v{b+4}, v{b+4}, v{b+6}');  e.I(f'v_add_f32 v{b+5}, v{b+5}, v{b+7}')
        e.I(f'v_add_f32 v{b}, v{b}, v{b+4}');  e.I(f'v_add_f32 v{b+1}, v{b+1}, v{b+5}')
    for sw in ('v_permlane16_swap_b32', 'v_permlane32_swap_b32'):
        for b in (G, G + 8):
            e.I(f'v_mov_b32 v{b+2}, v{b}'); e.I(f'v_mov_b32 v{b+3}, v{b+1}')
        for b in (G, G + 8):
            e.I(f'{sw} v{b}, v{b+2}'); e.I(f'{sw} v{b+1}, v{b+3}')
        for b in (G, G + 8):
            e.I(f'v_add_f32 v{b}, v{b}, v{b+2}');  e.I(f'v_add_f32 v{b+1}, v{b+1}, v{b+3}')
    inv = 0x3ae38e39
    for b, rs_, nb_ in ((G, 20, 22), (G + 8, 14, 16)):
        e.I(f'v_mul_f32 v{b}, {inv:#x}, v{b}')
        e.I(f'v_mul_f32 v{b+1}, {inv:#x}, v{b+1}')
        e.I(f'v_fma_f32 v{b+1}, -v{b}, v{b}, v{b+1}')
        e.I(f'v_max_f32 v{b+1}, 0, v{b+1}')
        e.I(f'v_add_f32 v{b+1}, 0x3727c5ac, v{b+1}')
        e.I(f'v_rsq_f32 v{rs_}, v{b+1}')
        e.I(f'v_mul_f32 v{rs_}, {NLOG2E:#x}, v{rs_}')
        e.I(f'v_mul_f32 v{nb_}, v{b}, v{rs_}')
        e.I(f'v_sub_f32 v{nb_}, 0, v{nb_}')
        e.I(f'v_mov_b32 v{rs_+1}, v{rs_}')
        e.I(f'v_mov_b32 v{nb_+1}, v{nb_}')
    for op in norm_ops(0):
        emit_op(op)
    st(2)

    sl = []
    for u, (ph, s, x) in enumerate(units):
        for k in range(18):
            if ph == 'A':
                t9, isu = k // 2, k % 2
                sl.append(dict(u=u, ph='A', s=s, T=9 * x + t9, isu=isu, off=isu * SUB + 32 * t9))
            else:
                sl.append(dict(u=u, ph='B', s=s, hf=x, T=k, off=(k // 9) * SUB + 32 * (k % 9)))
    NM = len(sl)
    first_rd = {u: 18 * u for u in range(NU)}
    last_rd = {u: 18 * u + 17 for u in range(NU)}
    lastA, lastB, firstS, firstX, lastX = {}, {}, {}, {}, {}
    for i, m in enumerate(sl):
        if m['ph'] == 'A':
            lastA[m['T'] // 2] = i
            firstX.setdefault(m['s'], i); lastX[m['s']] = i
        else:
            lastB[(m['hf'], m['T'] // 2)] = i
            if m['hf'] == 0:
                firstS.setdefault(m['s'], i)
    cur_par = [0]
    def rd(i, half):
        m = sl[i]
        f = FB + 4 * (i % NF) + 2 * half
        u = m['u']
        if half == 0:
            par = (u // 4) & 1
            if par != cur_par[0]:
                e.I('v_add_u32 v12, s54, v12')
                e.I('v_add_u32 v13, s54, v13')
                e.I('s_sub_u32 s54, 0, s54')
                cur_par[0] = par
        base = 12 + (u % 4) // 2
        o = (u % 2) * SLOT + m['off'] + half * WREG
        e.L(f'ds_read_b64_tr_b16 a[{f}:{f+1}], v{base} offset:{o}', ('f', i))

    tasks = []
    for s in range(1, 18):
        rdy = max(firstX[s] - 36, lastX.get(s - 2, -1) + 1, 0)
        ops = norm_ops(s)
        if s + 2 < 18:
            ops = ops + xload_ops(s + 2)
        tasks.append(Task(ops, rdy, firstX[s]))
    tasks.append(Task(xload_ops(2), 0, 4))
    def glu_ops(sp):
        ops = []
        for mt in range(2):
            for tt in range(2):
                T = 2 * sp + tt
                kg, g = gu_reg(T, mt, 0)
                ku, u_ = gu_reg(T, mt, 1)
                Tm = [24, 25, 26, 27]
                if kg == 'a':
                    for c in range(4):
                        ops.append(f'v_accvgpr_read_b32 v{Tm[c]}, a{g+c}')
                    for c in range(4):
                        ops.append(f'v_accvgpr_read_b32 v{28+c}, a{u_+c}')
                    g, u_ = 24, 28
                for c in range(4):
                    ops.append(f'v_exp_f32 v{Tm[c]}, v{g+c}')
                for c in (0, 2):
                    ops.append(f'v_pk_add_f32 v[{Tm[c]}:{Tm[c]+1}], v[{Tm[c]}:{Tm[c]+1}], 1.0 op_sel_hi:[1,0]')
                for c in range(4):
                    ops.append(f'v_rcp_f32 v{Tm[c]}, v{Tm[c]}')
                for c in (0, 2):
                    ops.append(f'v_pk_mul_f32 v[{Tm[c]}:{Tm[c]+1}], v[{Tm[c]}:{Tm[c]+1}], v[{u_+c}:{u_+c+1}]')
                h = hh_reg(sp, mt) + 2 * tt
                if sp == 0:
                    h = (14, 22)[0] if False else None
                ops.append(('cvt', sp, mt, tt))
        return ops
    def glu_final(sp):
        out = []
        for op in glu_ops(sp):
            if isinstance(op, tuple):
                _, sp_, mt, tt = op
                h = hh_reg(sp_, mt) + 2 * tt
                out.append(('I', f'v_cvt_pk_bf16_f32 v{h}, v24, v25'))
                out.append(('I', f'v_cvt_pk_bf16_f32 v{h+1}, v26, v27'))
            else:
                out.append(('I', op))
        return out
    for sp in range(9):
        tasks.append(Task(glu_final(sp), lastA[sp] + 3, firstS[sp]))
    def store_ops(hf, P):
        ops = []
        for mt in range(2):
            kind, r = out_reg(hf, 2 * P, mt)
            if kind == 'a':
                for c in range(8):
                    ops.append(('I', f'v_accvgpr_read_b32 v{24+c}, a{r+c}'))
                r = 24
            for c in range(4):
                ops.append(('I', f'v_cvt_pk_bf16_f32 v{r+c}, v{r+2*c}, v{r+2*c+1}'))
            ops.append(('I', f's_mov_b32 s33, {(hf*9+P)*1024}'))
            ops.append(('V', f'buffer_store_dwordx4 v[{r}:{r+3}], v{18+mt}, s[20:23], s33 offen{stflag}', ('st', hf, P, mt)))
        return ops
    for P in range(9):
        tasks.append(Task(store_ops(0, P), lastB[(0, P)] + 3, NM - 40 + P))
    for P in range(9):
        tasks.append(Task(store_ops(1, P), lastB[(1, P)] + 3, NM + P))

    dma_q = []
    next_dma = [PRO]
    active = [None]
    def run_fillers(i, budget, force_only=False):
        n = 0
        while dma_q and n < 1 and not force_only:
            op = dma_q.pop(0)
            emit_op(op)
            budget -= 1
            if op[0] in 'VX':
                n += 1
        while True:
            forced = [tk for tk in tasks if tk.ops and tk.deadline <= i]
            tk = active[0] if active[0] is not None and active[0].ops else None
            if tk is None:
                cand = sorted([t_ for t_ in tasks if t_.ops and t_.ready <= i], key=lambda t_: t_.deadline)
                if not cand:
                    assert not forced
                    return
                tk = cand[0]
                active[0] = tk
            if budget <= 0 and not forced:
                return
            emit_op(tk.ops.pop(0)); budget -= 1
    def barrier_for(u, i):
        while dma_q and any(op[0] in 'VX' and op[2][1] <= u + 1 for op in dma_q):
            emit_op(dma_q.pop(0))
        e.wait_vm(('dma', u))
        e.I('s_barrier')
        while next_dma[0] < NU and (next_dma[0] < 8 or last_rd[next_dma[0] - 8] <= i - 1):
            dma_q.extend(dma_ops(next_dma[0])); next_dma[0] += 1

    barrier_for(0, 0)
    for i in range(D):
        rd(i, 0); rd(i, 1)
    L0, LN_IT = LSTART * 18, LITER
    for i in range(NM):
        m = sl[i]
        if loop and i >= L0 and (i - L0) % 72 == 0 and (i - L0) // 72 <= LN_IT:
            k = (i - L0) // 72
            if k > 0:
                e.I('s_sub_u32 s55, s55, 1')
                e.I('s_cbranch_scc1 L_k3_loop')
            else:
                e.I(f's_mov_b32 s55, {LN_IT - 1}')
                st(7)
            e.raw(f';@ITER {k}')
            if k == LN_IT:
                st(8)
        if i in (first_rd[32], first_rd[36], first_rd[45]):
            st({first_rd[32]: 3, first_rd[36]: 4, first_rd[45]: 5}[i])
        bud = budgetA if i < first_rd[34] + 4 else (budgetB if i < first_rd[45] or i > NM - 20 else budgetC)
        b0 = (bud // 2 - (1 if i % 2 == 0 and bud <= 2 else 0)) if split else 0
        run_fillers(i, max(b0, 0), force_only=True)
        j = i + D
        if j < NM:
            if j % 18 == 0:
                barrier_for(j // 18, i)
            rd(j, 0)
        if i % 2 == 0:
            e.wait_lg(('f', min(i + 1, NM - 1)))
        f = FB + 4 * (i % NF)
        def mf(mt):
            if m['ph'] == 'A':
                acc = q4(gu_reg(m['T'], mt, m['isu']))
                b = XN + 8 * (m['s'] % 2) + 4 * mt
            else:
                acc = q4(out_reg(m['hf'], m['T'], mt))
                b = hh_reg(m['s'], mt)
            c = acc if m['s'] > 0 else '0'
            e.I(f'v_mfma_f32_16x16x32_bf16 {acc}, a[{f}:{f+3}], v[{b}:{b+3}], {c}')
        mf(0)
        if j < NM:
            rd(j, 1)
        run_fillers(i, bud - bud // 2 if split else bud)
        mf(1)
    st(6)
    run_fillers(NM + 100, 10000)
    st.dump()
    e.label('L_k3_done')
    e.I('s_endpgm')
    txt = e.finalize()
    if loop:
        lines = txt.split('\n')
        idx = [n for n, l in enumerate(lines) if l.startswith(';@ITER')]
        segs = [lines[idx[k] + 1: idx[k + 1]] for k in range(LN_IT)]
        for k in range(1, LN_IT):
            if segs[k] != segs[0]:
                for a, b in zip(segs[0], segs[k]):
                    if a != b:
                        raise Exception(f'loop body mismatch iter {k}: {a} | {b}')
                raise Exception(f'loop body length mismatch iter {k}')
        body = list(segs[0])
        assert body[-1].strip() == 's_cbranch_scc1 L_k3_loop'
        body[-1] = '    s_cbranch_scc0 L_k3_loop'
        lines = lines[:idx[0]] + ['L_k3_loop:'] + body + lines[idx[LN_IT] + 1:]
        txt = '\n'.join(lines)
    return txt + kd(name, 512, 256)


def gen_k4(name='red_kernel', scale=0xbf317218):
    e = Em()
    e.raw(head(name))
    e.I('s_cmp_ge_u32 s2, 256')
    e.I('s_cbranch_scc1 L_k4_done')
    e.I('s_load_dwordx2 s[4:5], s[0:1], 56')
    e.I('s_load_dwordx2 s[6:7], s[0:1], 72')
    e.I('v_lshrrev_b32 v1, 6, v0')
    e.I('v_readfirstlane_b32 s3, v1')
    e.I('v_and_b32 v1, 63, v0')
    e.I('s_mul_i32 s20, s2, 9')
    e.I('s_add_u32 s20, s20, s3')
    e.I('s_mul_i32 s21, s20, 3641')
    e.I('s_lshr_b32 s21, s21, 16')
    e.I('s_mul_i32 s22, s21, 18')
    e.I('s_sub_u32 s22, s20, s22')
    e.I('s_lshl_b32 s23, s20, 10')
    e.I('v_lshl_add_u32 v2, v1, 4, s23')
    e.I('s_lshl_b32 s24, s21, 4')
    e.I('v_and_b32 v3, 15, v1')
    e.I('v_add_u32 v3, s24, v3')
    e.I('v_mul_u32_u24 v3, 1152, v3')
    e.I('v_lshrrev_b32 v4, 4, v1')
    e.I('v_lshl_add_u32 v3, v4, 3, v3')
    e.I('s_lshl_b32 s25, s22, 6')
    e.I('v_add_u32 v3, s25, v3')
    e.I('s_mov_b32 s27, 0xffff0000')
    e.I('s_waitcnt lgkmcnt(0)')
    srd_off(e, 16, 6, 7, WS_P, 16 * ACT_BYTES)
    e.I('s_mov_b32 s26, 0')
    for j in range(16):
        e.V(f'buffer_load_dwordx4 v[{12+4*j}:{15+4*j}], v2, s[16:19], s26 offen', ('p', j))
        if j < 15:
            e.I(f's_add_u32 s26, s26, {ACT_BYTES}')
    srd_off(e, 12, 6, 7, WS_H, ACT_BYTES)
    e.V('buffer_load_dwordx4 v[8:11], v2, s[12:15], 0 offen', 'h')
    srd(e, 8, 4, 5, ACT_BYTES)
    for j in range(16):
        e.wait_vm(('p', j))
        for c in range(4):
            r = 12 + 4 * j + c
            if j == 0:
                e.I(f'v_lshlrev_b32 v{80+2*c}, 16, v{r}')
                e.I(f'v_and_b32 v{81+2*c}, s27, v{r}')
            else:
                t = 88 + 2 * (c % 2)
                e.I(f'v_lshlrev_b32 v{t}, 16, v{r}')
                e.I(f'v_and_b32 v{t+1}, s27, v{r}')
                e.I(f'v_pk_add_f32 v[{80+2*c}:{81+2*c}], v[{80+2*c}:{81+2*c}], v[{t}:{t+1}]')
    e.I(f'v_mov_b32 v94, {scale:#x}')
    e.wait_vm('h')
    for c in range(4):
        t = 88 + 2 * (c % 2)
        e.I(f'v_lshlrev_b32 v{t}, 16, v{8+c}')
        e.I(f'v_and_b32 v{t+1}, s27, v{8+c}')
        e.I(f'v_fma_f32 v{80+2*c}, v{80+2*c}, v94, v{t}')
        e.I(f'v_fma_f32 v{81+2*c}, v{81+2*c}, v94, v{t+1}')
    for c in range(4):
        e.I(f'v_cvt_pk_bf16_f32 v{12+c}, v{80+2*c}, v{81+2*c}')
    e.V('buffer_store_dwordx2 v[12:13], v3, s[8:11], 0 offen', 'st')
    e.V('buffer_store_dwordx2 v[14:15], v3, s[8:11], 0 offen offset:32', 'st')
    e.label('L_k4_done')
    e.I('s_endpgm')
    return e.finalize() + kd(name, 96, 96)

for g in range(2304):
    assert (g * 3641) >> 16 == g // 18, g
```

```python
import sys
from k1v4 import gen_k1, K1_LDS
from k2v3 import gen_k2, K2_LDS
from k3v3 import gen_k3, gen_k4, K3_LDS
def build(path, k3kw=None, header_comment='', stamps=False, k1kw=None, k2kw=None, k4kw=None):
    fuse = (k3kw or {}).get('fuse', False)
    k4line = '' if fuse else '; @launch kernel=red_kernel grid=(256,1,1) block=(576,1,1) lds=%d' % (147456 if (k4kw or {}).get('dma', False) else 0) + '\n'
    hdr = header_comment + f"""; @launch kernel=qkv_kernel grid=(256,1,1) block=(256,1,1) lds={K1_LDS}
; @launch kernel=attn_kernel grid=(256,1,1) block=(512,1,1) lds={K2_LDS}
; @launch kernel=ffn_kernel grid=(256,1,1) block=(256,1,1) lds={K3_LDS}
{k4line}.amdgcn_target "amdgcn-amd-amdhsa--gfx950"
.text
"""
    open(path, 'w').write(hdr + gen_k1(stamps=stamps, **(k1kw or {})) + gen_k2(stamps=stamps, **(k2kw or {})) + gen_k3(**(k3kw or {})) + ('' if fuse else gen_k4(**(k4kw or {}))) + 'L_code_end:\n    s_endpgm\n')
if __name__ == '__main__':
    import os
    build('dev/' + os.environ.get('OUT', 'full.s'), stamps=True, k3kw=dict(stamps=True))
    if os.environ.get('K1EXP'):
        for nm, kw in (('e_a', dict()), ('e_b', dict(pkn=False)), ('e_c', dict(split=False)), ('e_d', dict(budgetA=3)), ('e_e', dict(budgetB=6))):
            build(f'dev/{nm}.s', stamps=True, k3kw=dict(stamps=True, **kw))
```

```python
from asmlib import Em, Ins
from common import *

import os
PADV = os.environ.get('K3PAD', '0') == '1'
WREG = 5120 if PADV else 4608
SUB = 2 * WREG
SLOT = 2 * SUB + (0 if PADV else 64)
NSLOT = 8
K3_LDS = SLOT * NSLOT
NF = 8
XR = 32
XN = 48
GB = 64
FB = 224

def gu_reg(T, mt, isu):
    blk, o = T // 2, ((T % 2) * 2 + mt) * 8 + isu * 4
    return ('v', GB + 32 * blk + o) if blk < 6 else ('a', 32 * (blk - 6) + o)
def hh_reg(sp, mt):
    return GB + 8 * sp + 4 * mt
def out_reg(hf, T, mt):
    P, o = T // 2, mt * 8 + (T % 2) * 4
    if hf == 0:
        return ('a', 96 + 16 * P + o) if P < 8 else ('v', XR + o)
    if P < 7:
        return ('v', GB + 80 + 16 * P + o)
    return ('v', XN + o) if P == 7 else ('a', o)
def q4(kb):
    return f'{kb[0]}[{kb[1]}:{kb[1]+3}]'

class Task:
    def __init__(self, ops, ready, deadline):
        self.ops = list(ops); self.ready = ready; self.deadline = deadline

def gen_k3(name='ffn_kernel', D=6, budgetA=2, budgetB=4, budgetC=2, stamps=False, loop=True, LSTART=5, LITER=5, stflag=' sc0 sc1', fuse=False, pkn=False, split=False, PRO=3, g3=True):
    e = Em()
    st = Stamps(e, stamps, 2)
    e.raw(head(name))
    e.I('s_cmp_ge_u32 s2, 256')
    e.I('s_cbranch_scc1 L_k3_done')
    st(0)
    e.I('s_load_dwordx4 s[4:7], s[0:1], 32')
    e.I('s_load_dwordx2 s[28:29], s[0:1], 48')
    e.I('s_load_dwordx2 s[30:31], s[0:1], 72')
    e.I('v_lshrrev_b32 v1, 6, v0')
    e.I('v_readfirstlane_b32 s3, v1')
    e.I('v_and_b32 v1, 63, v0')
    e.I('s_and_b32 s24, s2, 7')
    e.I('s_lshl_b32 s24, s24, 1')
    e.I('s_bfe_u32 s25, s2, 0x10003')
    e.I('s_add_u32 s24, s24, s25')
    e.I('s_lshr_b32 s25, s2, 4')
    e.I('s_mov_b32 s34, -1')
    e.I('s_mov_b32 s35, 0')
    e.I('s_and_b32 s36, s3, 1')
    e.I('s_lshr_b32 s37, s3, 1')
    e.I(f's_mul_i32 s26, s3, {WREG}')
    e.I('s_mul_i32 s38, s36, %d' % (16 * 9216))
    e.I('s_mul_i32 s39, s24, 576')
    e.I('s_add_u32 s38, s38, s39')
    e.I('s_mul_i32 s39, s36, %d' % (16 * 1152))
    e.I('s_mul_i32 s40, s24, %d' % (288 * 1152))
    e.I('s_add_u32 s39, s39, s40')
    e.I('s_mul_i32 s40, s37, 288')
    e.I('s_add_u32 s39, s39, s40')
    e.I('s_movk_i32 s41, 9216')
    e.I('s_movk_i32 s42, 1152')
    e.I('s_lshl_b32 s43, s25, 2')
    e.I('s_add_u32 s43, s43, s3')
    e.I('s_mul_i32 s44, s43, %d' % (36 * 1024))
    e.I('v_lshlrev_b32 v18, 4, v1')
    e.I('v_add_u32 v18, s44, v18')
    e.I(f'v_add_u32 v19, {18*1024}, v18')
    e.I('s_lshl_b32 s45, s43, 12')
    e.I('v_lshl_add_u32 v22, v1, 4, s45')
    for j in range(5):
        e.I(f'v_add_u32 v24, {64*j}, v1')
        e.I('v_mul_u32_u24 v25, 3641, v24')
        e.I('v_lshrrev_b32 v25, 16, v25')
        e.I('v_mul_u32_u24 v26, 18, v25')
        e.I('v_sub_u32 v26, v24, v26')
        e.I('v_lshlrev_b32 v26, 4, v26')
        jo = 1024 * min(j, 3)
        if jo:
            e.I(f'v_subrev_u32 v26, {jo}, v26')
        e.I(f'v_mad_u32_u24 v{2+j}, v25, s41, v26')
        e.I(f'v_add_u32 v{2+j}, s38, v{2+j}')
        e.I(f'v_mad_u32_u24 v{7+j}, v25, s42, v26')
        e.I(f'v_add_u32 v{7+j}, s39, v{7+j}')
    e.I('v_cmp_gt_u32 vcc, 32, v1')
    e.I(f'v_mov_b32 v24, {OOB}')
    e.I('v_cndmask_b32 v6, v24, v6, vcc')
    e.I('v_cndmask_b32 v11, v24, v11, vcc')
    e.I('s_waitcnt lgkmcnt(0)')
    e.I('s_cmp_eq_u32 s37, 0')
    e.I('s_cselect_b32 s8, s4, s6')
    e.I('s_cselect_b32 s9, s5, s7')
    e.I('s_and_b32 s9, s9, 0xffff')
    e.I('s_mov_b32 s10, %d' % (576 * 4608 * 2))
    e.I('s_mov_b32 s11, 0x00020000')
    srd_off(e, 48, 30, 31, WS_STATS, STATS_BYTES)
    srd_off(e, 16, 30, 31, WS_H, ACT_BYTES)
    for j in range(4):
        e.V(f'buffer_load_dwordx4 v[{GB+4*j}:{GB+4*j+3}], v22, s[48:51], 0 offen offset:{1024*j}', 'stat')
    e.I('s_mov_b32 s32, 0')
    e.I('s_mov_b32 s47, 0')
    e.I('s_mov_b32 s52, s26')
    e.I('s_lshl_b32 s53, s26, 1')
    e.I(f's_add_u32 s53, s53, {4*SLOT}')
    e.I(f's_mov_b32 s54, {4*SLOT}')
    e.I('s_mov_b32 s46, 0xffff0000')

    units = []
    for s in range(16):
        units += [('A', s, 0), ('A', s, 1)]
    units += [('A', 16, 0), ('A', 17, 0), ('A', 16, 1), ('A', 17, 1)]
    for sp in range(9):
        units.append(('B', sp, 0))
    if g3:
        subs = [(g, sp) for g in range(2) for sp in range(9)]
        for k in range(9):
            units.append(('C', subs[2 * k], subs[2 * k + 1]))
    else:
        for sp in range(9):
            units.append(('B', sp, 1))
    NU = 54
    def dma_ops(u):
        ph, s, x = units[u]
        ops = []
        p = u % 4
        if p == 0 and u > 0:
            ops.append(('I', 's_sub_u32 s52, s53, s52'))
        ops.append(('I', f's_add_u32 m0, s52, {p*SLOT}'))
        if ph == 'A':
            vb, sr = 2, 8
            if u >= 32:
                ops.append(('I', f's_mov_b32 s32, {s*32*9216 + x*288}'))
        elif ph == 'B':
            vb, sr = 7, 12
            ops.append(('I', f's_mov_b32 s32, {s*32*1152 + x*576}'))
        else:
            vb, sr = 7, 12
            o0 = s[1] * 32 * 1152 + 576 + s[0] * 288
            o1 = x[1] * 32 * 1152 + 576 + x[0] * 288 - 288
            ops.append(('G', ['s_cmp_eq_u32 s37, 0', f's_mov_b32 s32, {o1}', f's_cselect_b32 s32, {o0}, s32']))
        for j in range(4):
            ops.append(('V', f'buffer_load_dwordx4 v{vb+j}, s[{sr}:{sr+3}], s32 offen offset:{1024*j} lds', ('dma', u)))
        ops.append(('I', 's_add_u32 m0, m0, 0x400'))
        ops.append(('V' if PADV else 'X', f'buffer_load_dwordx4 v{vb+4}, s[{sr}:{sr+3}], s32 offen offset:3072 lds', ('dma', u)))
        if u < 32:
            ops.append(('I', f's_add_u32 s32, s32, {288 if x == 0 else 32*9216 - 288}'))
        return ops
    def xload_ops(s):
        r = XR + 8 * (s % 2)
        return [('V', f'buffer_load_dwordx4 v[{r}:{r+3}], v18, s[16:19], s47 offen', ('x', s)),
                ('V', f'buffer_load_dwordx4 v[{r+4}:{r+7}], v19, s[16:19], s47 offen', ('x', s)),
                ('I', 's_add_u32 s47, s47, 0x400')]
    def emit_op(op):
        if op[0] == 'I':
            e.I(op[1])
        elif op[0] == 'V':
            e.V(op[1], op[2])
        elif op[0] == 'W':
            e.wait_vm(op[1])
        elif op[0] == 'G':
            for t_ in op[1]:
                e.I(t_)
        elif op[0] == 'X':
            e.I('s_mov_b64 exec, s[34:35]')
            e.V(op[1], op[2])
            e.I('s_mov_b64 exec, -1')
    def norm_ops(s):
        ops = [('W', ('x', s))]
        for j in range(8):
            r = XR + 8 * (s % 2) + j
            d = XN + 8 * (s % 2) + j
            rs_, nb_ = (20, 22) if j < 4 else (14, 16)
            a, b = (24, 25) if j % 2 == 0 else (26, 27)
            ops.append(('I', f'v_lshlrev_b32 v{a}, 16, v{r}'))
            ops.append(('I', f'v_and_b32 v{b}, s46, v{r}'))
            if pkn:
                ops.append(('I', f'v_pk_fma_f32 v[{a}:{b}], v[{a}:{b}], v[{rs_}:{rs_+1}], v[{nb_}:{nb_+1}]'))
            else:
                ops.append(('I', f'v_fma_f32 v{a}, v{a}, v{rs_}, v{nb_}'))
                ops.append(('I', f'v_fma_f32 v{b}, v{b}, v{rs_}, v{nb_}'))
            ops.append(('I', f'v_cvt_pk_bf16_f32 v{d}, v{a}, v{b}'))
        return ops

    for u in range(PRO):
        if u in (0, 2):
            for op in xload_ops(u // 2):
                emit_op(op)
        for op in dma_ops(u):
            emit_op(op)
        if u == 0:
            srd(e, 12, 28, 29, 4608 * 576 * 2)
            e.I('s_mul_i32 s45, s24, %d' % ACT_BYTES)
            e.I('s_add_u32 s45, s45, %d' % WS_P)
            srd_off(e, 20, 30, 31, 's45', ACT_BYTES)
    st(1)
    e.I('v_and_b32 v24, 3, v1')
    e.I('v_lshrrev_b32 v25, 2, v1')
    e.I('v_mul_u32_u24 v25, 288, v25')
    e.I('v_lshl_add_u32 v12, v24, 3, v25')
    e.I(f'v_add_u32 v13, {2*SLOT}, v12')
    e.wait_vm('stat')
    G = GB
    for b in (G, G + 8):
        e.I(f'v_add_f32 v{b}, v{b}, v{b+2}');  e.I(f'v_add_f32 v{b+1}, v{b+1}, v{b+3}')
        e.I(f'v_add_f32 v{b+4}, v{b+4}, v{b+6}');  e.I(f'v_add_f32 v{b+5}, v{b+5}, v{b+7}')
        e.I(f'v_add_f32 v{b}, v{b}, v{b+4}');  e.I(f'v_add_f32 v{b+1}, v{b+1}, v{b+5}')
    for sw in ('v_permlane16_swap_b32', 'v_permlane32_swap_b32'):
        for b in (G, G + 8):
            e.I(f'v_mov_b32 v{b+2}, v{b}'); e.I(f'v_mov_b32 v{b+3}, v{b+1}')
        for b in (G, G + 8):
            e.I(f'{sw} v{b}, v{b+2}'); e.I(f'{sw} v{b+1}, v{b+3}')
        for b in (G, G + 8):
            e.I(f'v_add_f32 v{b}, v{b}, v{b+2}');  e.I(f'v_add_f32 v{b+1}, v{b+1}, v{b+3}')
    inv = 0x3ae38e39
    for b, rs_, nb_ in ((G, 20, 22), (G + 8, 14, 16)):
        e.I(f'v_mul_f32 v{b}, {inv:#x}, v{b}')
        e.I(f'v_mul_f32 v{b+1}, {inv:#x}, v{b+1}')
        e.I(f'v_fma_f32 v{b+1}, -v{b}, v{b}, v{b+1}')
        e.I(f'v_max_f32 v{b+1}, 0, v{b+1}')
        e.I(f'v_add_f32 v{b+1}, 0x3727c5ac, v{b+1}')
        e.I(f'v_rsq_f32 v{rs_}, v{b+1}')
        e.I(f'v_mul_f32 v{rs_}, {NLOG2E:#x}, v{rs_}')
        e.I(f'v_mul_f32 v{nb_}, v{b}, v{rs_}')
        e.I(f'v_sub_f32 v{nb_}, 0, v{nb_}')
        e.I(f'v_mov_b32 v{rs_+1}, v{rs_}')
        e.I(f'v_mov_b32 v{nb_+1}, v{nb_}')
    for op in norm_ops(0):
        emit_op(op)
    st(2)

    sl = []
    for u, (ph, s, x) in enumerate(units):
        for k in range(18):
            if ph == 'A':
                t9, isu = k // 2, k % 2
                sl.append(dict(u=u, ph='A', s=s, T=9 * x + t9, isu=isu, off=isu * SUB + 32 * t9))
            elif ph == 'B':
                sl.append(dict(u=u, ph='B', s=s, hf=x, T=k, off=(k // 9) * SUB + 32 * (k % 9)))
            else:
                g, sp = (s, x)[k // 9]
                sl.append(dict(u=u, ph='B', s=sp, hf=1, T=9 * g + k % 9, off=(k // 9) * SUB + 32 * (k % 9)))
    NM = len(sl)
    first_rd = {u: 18 * u for u in range(NU)}
    last_rd = {u: 18 * u + 17 for u in range(NU)}
    lastA, lastB, firstS, firstX, lastX = {}, {}, {}, {}, {}
    for i, m in enumerate(sl):
        if m['ph'] == 'A':
            lastA[m['T'] // 2] = i
            firstX.setdefault(m['s'], i); lastX[m['s']] = i
        else:
            lastB[(m['hf'], m['T'] // 2)] = i
            if m['hf'] == 0:
                firstS.setdefault(m['s'], i)
    cur_par = [0]
    def rd(i, half):
        m = sl[i]
        f = FB + 4 * (i % NF) + 2 * half
        u = m['u']
        if half == 0:
            par = (u // 4) & 1
            if par != cur_par[0]:
                e.I('v_add_u32 v12, s54, v12')
                e.I('v_add_u32 v13, s54, v13')
                e.I('s_sub_u32 s54, 0, s54')
                cur_par[0] = par
        base = 12 + (u % 4) // 2
        o = (u % 2) * SLOT + m['off'] + half * WREG
        e.L(f'ds_read_b64_tr_b16 a[{f}:{f+1}], v{base} offset:{o}', ('f', i))

    tasks = []
    for s in range(1, 18):
        rdy = max(firstX[s] - 36, lastX.get(s - 2, -1) + 1, 0)
        ops = norm_ops(s)
        if s + 2 < 18:
            ops = ops + xload_ops(s + 2)
        tasks.append(Task(ops, rdy, firstX[s]))
    tasks.append(Task(xload_ops(2), 0, 4))
    def glu_ops(sp):
        ops = []
        for mt in range(2):
            for tt in range(2):
                T = 2 * sp + tt
                kg, g = gu_reg(T, mt, 0)
                ku, u_ = gu_reg(T, mt, 1)
                Tm = [24, 25, 26, 27]
                if kg == 'a':
                    for c in range(4):
                        ops.append(f'v_accvgpr_read_b32 v{Tm[c]}, a{g+c}')
                    for c in range(4):
                        ops.append(f'v_accvgpr_read_b32 v{28+c}, a{u_+c}')
                    g, u_ = 24, 28
                for c in range(4):
                    ops.append(f'v_exp_f32 v{Tm[c]}, v{g+c}')
                for c in (0, 2):
                    ops.append(f'v_pk_add_f32 v[{Tm[c]}:{Tm[c]+1}], v[{Tm[c]}:{Tm[c]+1}], 1.0 op_sel_hi:[1,0]')
                for c in range(4):
                    ops.append(f'v_rcp_f32 v{Tm[c]}, v{Tm[c]}')
                for c in (0, 2):
                    ops.append(f'v_pk_mul_f32 v[{Tm[c]}:{Tm[c]+1}], v[{Tm[c]}:{Tm[c]+1}], v[{u_+c}:{u_+c+1}]')
                h = hh_reg(sp, mt) + 2 * tt
                if sp == 0:
                    h = (14, 22)[0] if False else None
                ops.append(('cvt', sp, mt, tt))
        return ops
    def glu_final(sp):
        out = []
        for op in glu_ops(sp):
            if isinstance(op, tuple):
                _, sp_, mt, tt = op
                h = hh_reg(sp_, mt) + 2 * tt
                out.append(('I', f'v_cvt_pk_bf16_f32 v{h}, v24, v25'))
                out.append(('I', f'v_cvt_pk_bf16_f32 v{h+1}, v26, v27'))
            else:
                out.append(('I', op))
        return out
    for sp in range(9):
        tasks.append(Task(glu_final(sp), lastA[sp] + 3, firstS[sp]))
    def store_ops(hf, P):
        ops = []
        for mt in range(2):
            kind, r = out_reg(hf, 2 * P, mt)
            if kind == 'a':
                for c in range(8):
                    ops.append(('I', f'v_accvgpr_read_b32 v{24+c}, a{r+c}'))
                r = 24
            for c in range(4):
                ops.append(('I', f'v_cvt_pk_bf16_f32 v{r+c}, v{r+2*c}, v{r+2*c+1}'))
            ops.append(('I', f's_mov_b32 s33, {(hf*9+P)*1024}'))
            ops.append(('V', f'buffer_store_dwordx4 v[{r}:{r+3}], v{18+mt}, s[20:23], s33 offen{stflag}', ('st', hf, P, mt)))
        return ops
    for P in range(9):
        tasks.append(Task(store_ops(0, P), lastB[(0, P)] + 3, NM - 90 + P))
    for P in range(9):
        tasks.append(Task(store_ops(1, P), lastB[(1, P)] + 3, NM + P))

    dma_q = []
    next_dma = [PRO]
    active = [None]
    def run_fillers(i, budget, force_only=False):
        n = 0
        while dma_q and n < 1 and not force_only:
            op = dma_q.pop(0)
            emit_op(op)
            budget -= 1
            if op[0] in 'VX':
                n += 1
        while True:
            forced = [tk for tk in tasks if tk.ops and tk.deadline <= i]
            tk = active[0] if active[0] is not None and active[0].ops else None
            if tk is None:
                cand = sorted([t_ for t_ in tasks if t_.ops and t_.ready <= i], key=lambda t_: t_.deadline)
                if not cand:
                    assert not forced
                    return
                tk = cand[0]
                active[0] = tk
            if budget <= 0 and not forced:
                return
            emit_op(tk.ops.pop(0)); budget -= 1
    def barrier_for(u, i):
        while dma_q and any(op[0] in 'VX' and op[2][1] <= u + 1 for op in dma_q):
            emit_op(dma_q.pop(0))
        e.wait_vm(('dma', u))
        e.I('s_barrier')
        while next_dma[0] < NU and (next_dma[0] < 8 or last_rd[next_dma[0] - 8] <= i - 1):
            dma_q.extend(dma_ops(next_dma[0])); next_dma[0] += 1

    barrier_for(0, 0)
    for i in range(D):
        rd(i, 0); rd(i, 1)
    L0, LN_IT = LSTART * 18, LITER
    for i in range(NM):
        m = sl[i]
        if loop and i >= L0 and (i - L0) % 72 == 0 and (i - L0) // 72 <= LN_IT:
            k = (i - L0) // 72
            if k > 0:
                e.I('s_sub_u32 s55, s55, 1')
                e.I('s_cbranch_scc1 L_k3_loop')
            else:
                e.I(f's_mov_b32 s55, {LN_IT - 1}')
                st(7)
            e.raw(f';@ITER {k}')
            if k == LN_IT:
                st(8)
        if i in (first_rd[32], first_rd[36], first_rd[45]):
            st({first_rd[32]: 3, first_rd[36]: 4, first_rd[45]: 5}[i])
        bud = budgetA if i < first_rd[34] + 4 else (budgetB if i < first_rd[45] or i > NM - 20 else budgetC)
        b0 = (bud // 2 - (1 if i % 2 == 0 and bud <= 2 else 0)) if split else 0
        run_fillers(i, max(b0, 0), force_only=True)
        j = i + D
        if j < NM:
            if j % 18 == 0:
                barrier_for(j // 18, i)
            rd(j, 0)
        if i % 2 == 0:
            e.wait_lg(('f', min(i + 1, NM - 1)))
        f = FB + 4 * (i % NF)
        def mf(mt):
            if m['ph'] == 'A':
                acc = q4(gu_reg(m['T'], mt, m['isu']))
                b = XN + 8 * (m['s'] % 2) + 4 * mt
            else:
                acc = q4(out_reg(m['hf'], m['T'], mt))
                b = hh_reg(m['s'], mt)
            c = acc if m['s'] > 0 else '0'
            e.I(f'v_mfma_f32_16x16x32_bf16 {acc}, a[{f}:{f+3}], v[{b}:{b+3}], {c}')
        mf(0)
        if j < NM:
            rd(j, 1)
        run_fillers(i, bud - bud // 2 if split else bud)
        mf(1)
    st(6)
    run_fillers(NM + 100, 10000)
    st.dump()
    e.label('L_k3_done')
    e.I('s_endpgm')
    txt = e.finalize()
    if loop:
        lines = txt.split('\n')
        idx = [n for n, l in enumerate(lines) if l.startswith(';@ITER')]
        segs = [lines[idx[k] + 1: idx[k + 1]] for k in range(LN_IT)]
        for k in range(1, LN_IT):
            if segs[k] != segs[0]:
                for a, b in zip(segs[0], segs[k]):
                    if a != b:
                        raise Exception(f'loop body mismatch iter {k}: {a} | {b}')
                raise Exception(f'loop body length mismatch iter {k}')
        body = list(segs[0])
        assert body[-1].strip() == 's_cbranch_scc1 L_k3_loop'
        body[-1] = '    s_cbranch_scc0 L_k3_loop'
        lines = lines[:idx[0]] + ['L_k3_loop:'] + body + lines[idx[LN_IT] + 1:]
        txt = '\n'.join(lines)
    return txt + kd(name, 512, 256)


def gen_k4(name='red_kernel', scale=0xbf317218, dma=False):
    e = Em()
    e.raw(head(name))
    e.I('s_cmp_ge_u32 s2, 256')
    e.I('s_cbranch_scc1 L_k4_done')
    e.I('s_load_dwordx2 s[4:5], s[0:1], 56')
    e.I('s_load_dwordx2 s[6:7], s[0:1], 72')
    e.I('v_lshrrev_b32 v1, 6, v0')
    e.I('v_readfirstlane_b32 s3, v1')
    e.I('v_and_b32 v1, 63, v0')
    e.I('s_mul_i32 s20, s2, 9')
    e.I('s_add_u32 s20, s20, s3')
    e.I('s_mul_i32 s21, s20, 3641')
    e.I('s_lshr_b32 s21, s21, 16')
    e.I('s_mul_i32 s22, s21, 18')
    e.I('s_sub_u32 s22, s20, s22')
    e.I('s_lshl_b32 s23, s20, 10')
    e.I('v_lshl_add_u32 v2, v1, 4, s23')
    e.I('s_lshl_b32 s24, s21, 4')
    e.I('v_and_b32 v3, 15, v1')
    e.I('v_add_u32 v3, s24, v3')
    e.I('v_mul_u32_u24 v3, 1152, v3')
    e.I('v_lshrrev_b32 v4, 4, v1')
    e.I('v_lshl_add_u32 v3, v4, 3, v3')
    e.I('s_lshl_b32 s25, s22, 6')
    e.I('v_add_u32 v3, s25, v3')
    e.I('s_mov_b32 s27, 0xffff0000')
    e.I('s_waitcnt lgkmcnt(0)')
    srd_off(e, 16, 6, 7, WS_P, 16 * ACT_BYTES)
    e.I('s_mov_b32 s26, 0')
    if dma:
        e.I('s_lshl_b32 s28, s3, 14')
        e.I('s_mov_b32 m0, s28')
        e.I('v_lshl_add_u32 v5, v1, 4, s28')
    for j in range(16):
        if dma:
            e.V('buffer_load_dwordx4 v2, s[16:19], s26 offen lds', ('p', j))
            if j < 15:
                e.I('s_add_u32 m0, m0, 0x400')
        else:
            e.V(f'buffer_load_dwordx4 v[{12+4*j}:{15+4*j}], v2, s[16:19], s26 offen', ('p', j))
        if j < 15:
            e.I(f's_add_u32 s26, s26, {ACT_BYTES}')
    srd_off(e, 12, 6, 7, WS_H, ACT_BYTES)
    e.V('buffer_load_dwordx4 v[8:11], v2, s[12:15], 0 offen', 'h')
    srd(e, 8, 4, 5, ACT_BYTES)
    for j in range(16):
        if dma:
            if j % 4 == 0:
                e.wait_vm(('p', j + 3))
                for jj in range(j, j + 4):
                    e.L(f'ds_read_b128 v[{12+4*jj}:{15+4*jj}], v5 offset:{1024*jj}', ('l', jj))
            e.wait_lg(('l', j))
        else:
            e.wait_vm(('p', j))
        for c in range(4):
            r = 12 + 4 * j + c
            if j == 0:
                e.I(f'v_lshlrev_b32 v{80+2*c}, 16, v{r}')
                e.I(f'v_and_b32 v{81+2*c}, s27, v{r}')
            else:
                t = 88 + 2 * (c % 2)
                e.I(f'v_lshlrev_b32 v{t}, 16, v{r}')
                e.I(f'v_and_b32 v{t+1}, s27, v{r}')
                e.I(f'v_pk_add_f32 v[{80+2*c}:{81+2*c}], v[{80+2*c}:{81+2*c}], v[{t}:{t+1}]')
    e.I(f'v_mov_b32 v94, {scale:#x}')
    e.wait_vm('h')
    for c in range(4):
        t = 88 + 2 * (c % 2)
        e.I(f'v_lshlrev_b32 v{t}, 16, v{8+c}')
        e.I(f'v_and_b32 v{t+1}, s27, v{8+c}')
        e.I(f'v_fma_f32 v{80+2*c}, v{80+2*c}, v94, v{t}')
        e.I(f'v_fma_f32 v{81+2*c}, v{81+2*c}, v94, v{t+1}')
    for c in range(4):
        e.I(f'v_cvt_pk_bf16_f32 v{12+c}, v{80+2*c}, v{81+2*c}')
    e.V('buffer_store_dwordx2 v[12:13], v3, s[8:11], 0 offen', 'st')
    e.V('buffer_store_dwordx2 v[14:15], v3, s[8:11], 0 offen offset:32', 'st')
    e.label('L_k4_done')
    e.I('s_endpgm')
    return e.finalize() + kd(name, 96, 96)

for g in range(2304):
    assert (g * 3641) >> 16 == g // 18, g
```

```python
from asmlib import Em
from common import *

PQ_LDS = 64 * PQ_PITCH
WO_LDS = PQ_LDS
K2_LDS = PQ_LDS + 576 * 144 + 1024

def gen_k2(name='attn_kernel', stamps=False, pfup=False, rot=0, v3=True, late=False, pkm=False, wt=False):
    e = Em()
    st = Stamps(e, stamps, 1)
    e.raw(head(name))
    e.I('s_cmp_ge_u32 s2, 256')
    e.I('s_cbranch_scc1 L_k2_done')
    st(0)
    e.I('s_load_dwordx2 s[4:5], s[0:1], 0')
    e.I('s_load_dwordx2 s[6:7], s[0:1], 16')
    e.I('s_load_dwordx2 s[30:31], s[0:1], 72')
    e.I('s_load_dwordx4 s[84:87], s[0:1], 40')
    e.I('v_lshrrev_b32 v1, 6, v0')
    e.I('v_readfirstlane_b32 s3, v1')
    e.I('v_and_b32 v1, 63, v0')
    e.I('s_and_b32 s24, s2, 7')
    e.I('s_lshl_b32 s24, s24, 2')
    e.I('s_lshr_b32 s25, s2, 3')
    e.I('s_and_b32 s26, s25, 3')
    e.I('s_add_u32 s24, s24, s26')
    e.I('s_lshr_b32 s25, s25, 2')
    e.I('v_and_b32 v2, 15, v1')
    e.I('v_lshrrev_b32 v3, 4, v1')
    e.I(f'v_mov_b32 v6, {OOB}')
    e.I('v_min_u32 v5, 2, v3')
    e.I('v_lshlrev_b32 v5, 5, v5')
    e.I('s_lshl_b32 s28, s3, 13')
    e.I(f's_add_u32 s28, s28, {WO_LDS}')
    e.I('v_add_u32 v5, s28, v5')
    e.I('v_mul_u32_u24 v4, 96, v2')
    e.I('v_add_u32 v4, v4, v5')
    e.I('v_cmp_gt_u32 s[60:61], 3, v3')
    e.I('v_and_b32 v8, 3, v2')
    e.I('v_cmp_eq_u32 s[44:45], 2, v8')
    e.I('v_and_b32 v7, 1, v2')
    e.I('v_cndmask_b32 v7, v7, 2, s[44:45]')
    e.I('v_mul_u32_u24 v7, 96, v7')
    e.I('v_add3_u32 v7, v7, v5, 0')
    e.I('v_add_u32 v7, 1536, v7')
    e.I('v_cmp_gt_u32 s[46:47], 2, v2')
    e.I('s_or_b64 s[44:45], s[44:45], s[46:47]')
    e.I('s_and_b64 s[62:63], s[44:45], s[60:61]')
    e.I('s_mul_i32 s27, s3, %d' % (4 * KV_HEAD_BYTES))
    e.I('v_lshlrev_b32 v8, 4, v1')
    e.I('v_lshlrev_b32 v9, 4, v0')
    e.I('s_mul_i32 s29, s24, %d' % PQ_LDS)
    e.I('s_lshl_b32 s33, s3, 10')
    e.I('v_mul_u32_u24 v10, 57, v1')
    e.I('v_lshrrev_b32 v10, 9, v10')
    e.I('v_mul_u32_u24 v11, 9, v10')
    e.I('v_sub_u32 v11, v1, v11')
    e.I('v_mul_u32_u24 v10, 1152, v10')
    e.I('v_lshl_add_u32 v10, v11, 4, v10')
    e.I('s_mul_i32 s34, s25, 144')
    e.I('s_mul_i32 s35, s3, %d' % (6 * 1152))
    e.I('s_add_u32 s35, s35, s34')
    e.I('v_add_u32 v10, s35, v10')
    e.I('s_mul_i32 s48, s3, 864')
    e.I('s_lshr_b32 s56, s2, 3')
    e.I('s_mul_i32 s57, s56, 73')
    e.I('s_and_b32 s58, s2, 7')
    e.I('s_mul_i32 s58, s58, 2336')
    e.I('s_add_u32 s57, s57, s58')
    e.I('v_add_u32 v24, s57, v0')
    e.I('v_lshlrev_b32 v24, 7, v24')
    e.I('v_cmp_gt_u32 vcc, 73, v0')
    e.I('v_cndmask_b32 v24, v6, v24, vcc')
    e.I('s_mul_i32 s57, s56, 15')
    e.I('v_subrev_u32 v25, 128, v0')
    e.I('v_cmp_gt_u32 vcc, 15, v25')
    e.I('v_add_u32 v25, s57, v25')
    e.I('v_lshlrev_b32 v25, 7, v25')
    e.I('v_cndmask_b32 v25, v6, v25, vcc')
    e.I('s_waitcnt lgkmcnt(0)')
    srd_off(e, 20, 30, 31, WS_KV, 32 * KV_HEAD_BYTES)
    srd_off(e, 16, 30, 31, WS_PQ, PQ_BYTES)
    e.V('buffer_load_dword v26, v24, s[16:19], 0 offen', 'pf')
    e.V('buffer_load_dword v27, v25, s[20:23], 0 offen', 'pf')
    KVR = 64
    e.I('s_mov_b32 m0, s28')
    for j in range(8):
        e.V(f'buffer_load_dwordx4 v8, s[20:23], s27 offen offset:{1024*(j%4)} lds', ('kv', j))
        if j == 3:
            e.I('s_add_u32 m0, m0, 0x1000')
            e.I('s_add_u32 s27, s27, 0x1000')
    e.I('s_mov_b32 m0, s33')
    for j in range(10):
        if j == 9:
            e.I('s_cmp_lg_u32 s3, 0')
            e.I('s_cbranch_scc1 L_k2_skip_pq')
        e.V('buffer_load_dwordx4 v9, s[16:19], s29 offen lds', ('pq', j) if j < 9 else 'pf')
        if j < 9:
            e.I('s_add_u32 m0, m0, 0x2000')
            e.I('s_add_u32 s29, s29, 0x2000')
    e.label('L_k2_skip_pq')
    e.wait_vm(('kv', 7))
    for hh in range(4):
        for tl, vo in ((0, 4), (1, 7)):
            r = KVR + (hh * 2 + tl) * 8
            o = hh * KV_HEAD_BYTES - 8 * hh
            if hh % 2 == 0:
                e.L(f'ds_read_b128 v[{r}:{r+3}], v{vo} offset:{o}', ('kvr', hh))
                e.L(f'ds_read_b128 v[{r+4}:{r+7}], v{vo} offset:{o+16}', ('kvr', hh))
            else:
                for c in range(4):
                    e.L(f'ds_read_b64 v[{r+2*c}:{r+2*c+1}], v{vo} offset:{o+8*c}', ('kvr', hh))
    e.I('s_waitcnt lgkmcnt(0)')
    e.lg_done = len(e.lg)
    st(1)
    e.I(f'v_mul_u32_u24 v14, {PQ_PITCH}, v2')
    e.I('s_mul_i32 s57, s3, 144')
    e.I('v_add_u32 v14, s57, v14')
    e.I('v_lshl_add_u32 v15, v3, 3, v14')
    e.I('v_min_u32 v16, 2, v3')
    e.I('v_lshl_add_u32 v14, v16, 4, v14')
    e.I('v_cmp_eq_u32 s[58:59], 0, v3')
    KF = 128
    for f in range(8):
        r = KVR + f * 8
        for c in range(4):
            e.I(f'v_cvt_pk_bf16_f32 v{KF+4*f+c}, v{r+2*c}, v{r+2*c+1}')
        for c in range(4):
            e.I(f'v_cndmask_b32 v{KF+4*f+c}, 0, v{KF+4*f+c}, s[{60 if f % 2 == 0 else 62}:{61 if f % 2 == 0 else 63}]')
    st(2)
    e.I('s_waitcnt vmcnt(0)')
    e.I('s_barrier')
    st(3)
    PB = 64
    ACC = 160
    for mt in range(4):
        mo = mt * 16 * PQ_PITCH
        for hh in range(4):
            r = PB + (mt * 4 + hh) * 4
            e.L(f'ds_read_b128 v[{r}:{r+3}], v14 offset:{mo + 32*hh}', ('b', mt, hh))
    def wo_block():
        srd(e, 12, 6, 7, 576 * 576 * 2)
        srd(e, 8, 4, 5, ACT_BYTES)
        e.I(f's_add_u32 m0, s48, {WO_LDS}')
        e.I('s_mov_b32 s49, 0')
        e.I('s_mov_b32 s50, -1')
        e.I('s_mov_b32 s51, 0x3fffff')
        e.I('s_mov_b64 exec, s[50:51]')
        for j in range(12):
            e.V('buffer_load_dwordx4 v10, s[12:15], s49 offen lds', ('wo', j))
            if j < 11:
                e.I('s_add_u32 m0, m0, 6912')
                e.I(f's_add_u32 s49, s49, {48*1152}')
        e.I('s_mov_b64 exec, -1')
        e.I('s_and_b32 s52, s3, 3')
        e.I('s_lshr_b32 s53, s3, 2')
        e.I('s_lshl_b32 s35, s24, 6')
        e.I('s_lshl_b32 s54, s52, 4')
        e.I('s_add_u32 s35, s35, s54')
        e.I('v_add_u32 v12, s35, v2')
        e.I('v_mul_u32_u24 v13, 1152, v12')
        e.I('v_lshl_add_u32 v13, v3, 3, v13')
        e.I('s_mul_i32 s55, s53, 96')
        e.I('s_add_u32 s56, s55, s34')
        e.I('v_add_u32 v13, s56, v13')
        XR = 40
        for j in range(3):
            e.V(f'buffer_load_dwordx2 v[{XR+2*j}:{XR+2*j+1}], v13, s[8:11], 0 offen offset:{32*j}', ('x', j))
        e.I('s_lshr_b32 s82, s2, 3')
        e.I('s_lshl_b32 s82, s82, 3')
        e.I('s_add_u32 s82, s82, s3')
        e.I('s_mul_i32 s82, s82, 21')
        e.I(f's_add_u32 s83, s2, {rot}')
        e.I('s_and_b32 s83, s83, 7')
        e.I('s_mul_i32 s83, s83, 5184')
        e.I('v_min_u32 v46, 20, v1')
        e.I('v_add_u32 v46, s82, v46')
        e.I('v_min_u32 v46, 5183, v46')
        if pfup:
            e.I('v_mul_u32_u24 v48, 58255, v46')
            e.I('v_lshrrev_b32 v48, 19, v48')
            e.I('v_mul_u32_u24 v49, 9, v48')
            e.I('v_sub_u32 v49, v46, v49')
            e.I('v_mul_u32_u24 v48, 9216, v48')
            e.I('v_lshl_add_u32 v48, v49, 7, v48')
            e.I('s_and_b32 s88, s2, 7')
            e.I('s_mul_i32 s88, s88, 1152')
            e.I('v_add_u32 v48, s88, v48')
            e.V('global_load_dword v50, v48, s[84:85]', ('pfl', 1))
        e.I('v_add_u32 v46, s83, v46')
        e.I('v_lshlrev_b32 v46, 7, v46')
        e.V('global_load_dword v47, v46, s[86:87]', ('pfl', 0))
        srd_off(e, 36, 30, 31, WS_H, ACT_BYTES)
        srd_off(e, 40, 30, 31, WS_STATS, STATS_BYTES)
    XR = 40
    if not late:
        wo_block()
    for half in range(2):
        for idx in range(8 * half, 8 * half + 8):
            mt, hh = idx // 4, idx % 4
            r = PB + idx * 4
            acc = ACC + (idx % 8) * 8
            e.wait_lg(('b', mt, hh))
            e.I(f'v_mfma_f32_16x16x32_bf16 v[{acc}:{acc+3}], v[{KF+8*hh}:{KF+8*hh+3}], v[{r}:{r+3}], 0')
            e.I(f'v_mfma_f32_16x16x32_bf16 v[{acc+4}:{acc+7}], v[{KF+8*hh+4}:{KF+8*hh+7}], v[{r}:{r+3}], 0')
        if late and half == 0:
            wo_block()
        accs = [ACC + k * 8 for k in range(8)]
        for a in accs:
            e.I(f'v_add_f32 v{a+6}, 0x358637bd, v{a+6}')
        for a in accs:
            e.I(f'v_rcp_f32 v{a+6}, v{a+6}')
        if pkm:
            for c in (0, 2, 4):
                for a in accs:
                    e.I(f'v_pk_mul_f32 v[{a+c}:{a+c+1}], v[{a+c}:{a+c+1}], v[{a+6}:{a+7}] op_sel_hi:[1,0]')
        else:
          for c in range(6):
            for a in accs:
                e.I(f'v_mul_f32 v{a+c}, v{a+c}, v{a+6}')
        for a in accs:
            e.I(f'v_cvt_pk_bf16_f32 v{a}, v{a}, v{a+1}')
            e.I(f'v_cvt_pk_bf16_f32 v{a+1}, v{a+2}, v{a+3}')
            e.I(f'v_cvt_pk_bf16_f32 v{a+2}, v{a+4}, v{a+5}')
        for mt in (2 * half, 2 * half + 1):
            if mt > 0:
                e.I(f'v_add_u32 v{20+mt}, {mt*16*PQ_PITCH}, v15')
        for k, a in enumerate(accs):
            mt, hh = 2 * half + k // 4, k % 4
            wb = 15 if mt == 0 else 20 + mt
            if hh % 2 == 0:
                e.L(f'ds_write_b64 v{wb}, v[{a}:{a+1}] offset:{36*hh}', 'w')
            else:
                e.L(f'ds_write2_b32 v{wb}, v{a}, v{a+1} offset0:{9*hh} offset1:{9*hh+1}', 'w')
        e.I('s_mov_b64 exec, s[58:59]')
        for k, a in enumerate(accs):
            mt, hh = 2 * half + k // 4, k % 4
            e.L(f'ds_write_b32 v15, v{a+2} offset:{mt*16*PQ_PITCH + 36*hh + 32}', 'w')
        e.I('s_mov_b64 exec, -1')
    st(4)
    e.I('s_mul_i32 s57, s52, %d' % (16 * PQ_PITCH))
    e.I(f'v_mul_u32_u24 v14, {PQ_PITCH}, v2')
    e.I('v_lshl_add_u32 v14, v3, 4, v14')
    e.I('v_add_u32 v14, s57, v14')
    e.I('v_and_b32 v18, 3, v1')
    e.I('v_bfe_u32 v19, v1, 2, 2')
    e.I('v_lshl_add_u32 v19, v3, 3, v19')
    e.I('v_mul_u32_u24 v19, 144, v19')
    e.I('v_lshl_add_u32 v19, v18, 3, v19')
    e.I(f's_add_u32 s57, s55, {WO_LDS}')
    e.I('v_add_u32 v19, s57, v19')
    e.I(f'v_add_u32 v18, {9*32*144}, v19')
    e.I('s_waitcnt vmcnt(%d) lgkmcnt(0)' % (5 if pfup else 4))
    e.lg_done = len(e.lg)
    e.I('s_barrier')
    st(5)
    NB = 3
    def rd(s):
        bb = 64 + (s % NB) * 16
        e.L(f'ds_read_b128 v[{bb}:{bb+3}], v14 offset:{64*s}', ('g', s))
        base = 19 if s < 9 else 18
        so = (s % 9) * 32 * 144
        for T in range(3):
            r = bb + 4 + 4 * T
            e.L(f'ds_read_b64_tr_b16 v[{r}:{r+1}], v{base} offset:{so + 32*T}', ('g', s))
            e.L(f'ds_read_b64_tr_b16 v[{r+2}:{r+3}], v{base} offset:{so + 32*T + 4*144}', ('g', s))
    rd(0); rd(1)
    OA = 128
    for s in range(18):
        if s + 2 < 18:
            rd(s + 2)
        e.wait_lg(('g', s))
        bb = 64 + (s % NB) * 16
        for T in range(3):
            c = f'v[{OA+4*T}:{OA+3+4*T}]' if s > 0 else '0'
            e.I(f'v_mfma_f32_16x16x32_bf16 v[{OA+4*T}:{OA+3+4*T}], v[{bb+4+4*T}:{bb+7+4*T}], v[{bb}:{bb+3}], {c}')
    st(6)
    e.I('v_lshrrev_b32 v20, 4, v12')
    e.I('v_mul_u32_u24 v20, %d, v20' % (18 * 1024))
    e.I('v_lshl_add_u32 v20, v2, 4, v20')
    e.I('s_mul_i32 s57, s25, 72')
    e.I('s_mul_i32 s56, s53, 48')
    e.I('s_add_u32 s57, s57, s56')
    e.I('v_lshl_add_u32 v21, v3, 2, s57')
    e.I('v_bfe_u32 v22, v21, 2, 2')
    e.I('v_lshl_add_u32 v20, v22, 8, v20')
    e.I('v_lshrrev_b32 v21, 4, v21')
    for T in range(3):
        e.I(f'v_add_u32 v22, {T}, v21')
        e.I('v_lshrrev_b32 v39, 1, v22')
        e.I(f'v_lshl_add_u32 v{51+T}, v39, 10, v20')
        e.I('v_and_b32 v22, 1, v22')
        e.I(f'v_lshl_add_u32 v{51+T}, v22, 3, v{51+T}')
    e.I('v_lshl_add_u32 v23, v3, 2, s56')
    e.I('v_mov_b32 v30, 0')
    e.I('v_mov_b32 v31, 0')
    e.I('v_mov_b32 v28, 0x3f803f80')
    e.I('s_waitcnt vmcnt(%d)' % (2 if pfup else 1))
    for T in range(3):
        a = OA + 4 * T
        x = XR + 2 * T
        e.I(f'v_lshlrev_b32 v24, 16, v{x}')
        e.I(f'v_and_b32 v25, 0xffff0000, v{x}')
        e.I(f'v_lshlrev_b32 v26, 16, v{x+1}')
        e.I(f'v_and_b32 v27, 0xffff0000, v{x+1}')
        e.I(f'v_cmp_gt_u32 vcc, {72 - 16*T}, v23')
        for c in range(4):
            e.I(f'v_add_f32 v{a+c}, v{a+c}, v{24+c}')
        e.I(f'v_cvt_pk_bf16_f32 v{a}, v{a}, v{a+1}')
        e.I(f'v_cvt_pk_bf16_f32 v{a+1}, v{a+2}, v{a+3}')
        e.I(f'v_cndmask_b32 v{32+T}, v6, v{51+T}, vcc')
        e.V(f'buffer_store_dwordx2 v[{a}:{a+1}], v{32+T}, s[36:39], 0 offen' + (' sc0 sc1' if wt else ''), ('st', T))
        e.I(f'v_cndmask_b32 v{a+2}, 0, v{a}, vcc')
        e.I(f'v_cndmask_b32 v{a+3}, 0, v{a+1}, vcc')
        e.I(f'v_dot2_f32_bf16 v30, v{a+2}, v28, v30')
        e.I(f'v_dot2_f32_bf16 v31, v{a+2}, v{a+2}, v31')
        e.I(f'v_dot2_f32_bf16 v30, v{a+3}, v28, v30')
        e.I(f'v_dot2_f32_bf16 v31, v{a+3}, v{a+3}, v31')
    for sw in ('v_permlane16_swap_b32', 'v_permlane32_swap_b32'):
        e.I('v_mov_b32 v36, v30')
        e.I('v_mov_b32 v37, v31')
        e.I(f'{sw} v30, v36')
        e.I(f'{sw} v31, v37')
        e.I('v_add_f32 v30, v30, v36')
        e.I('v_add_f32 v31, v31, v37')
    e.I('v_lshrrev_b32 v38, 4, v12')
    e.I('v_lshlrev_b32 v38, 11, v38')
    e.I('v_lshl_add_u32 v38, v2, 4, v38')
    e.I('s_and_b32 s54, s25, 1')
    e.I('s_lshl_b32 s54, s54, 10')
    e.I('s_lshr_b32 s56, s25, 1')
    e.I('s_lshl_b32 s56, s56, 8')
    e.I('s_add_u32 s54, s54, s56')
    e.I('s_lshl_b32 s56, s53, 3')
    e.I('s_add_u32 s54, s54, s56')
    e.I('v_add_u32 v38, s54, v38')
    e.I('v_cndmask_b32 v38, v6, v38, s[58:59]')
    e.V('buffer_store_dwordx2 v[30:31], v38, s[40:43], 0 offen', ('st', 9))
    st.dump()
    e.label('L_k2_done')
    e.I('s_endpgm')
    return e.finalize() + kd(name, 224, 224)

for l in range(64):
    assert (l * 57) >> 9 == l // 9
```
